```python
import torch

def _softmax(x, axis=-1):
    return torch.softmax(x, dim=axis)
def _gelu(x):
    return torch.nn.functional.gelu(x, approximate="tanh")
def _silu(x):
    return torch.nn.functional.silu(x)
def _sigmoid(x):
    return torch.sigmoid(x)
def _layernorm(x, axis=-1, eps=1e-5):
    m = x.mean(dim=axis, keepdim=True)
    v = x.var(dim=axis, keepdim=True, unbiased=False)
    return (x - m) / torch.sqrt(v + eps)
def _scatter_add(tgt, idx, src, axis=0):
    return tgt.clone().index_add_(axis, idx, src)
def _segment_sum(src, seg, n):
    out = torch.zeros((n,) + src.shape[1:], dtype=src.dtype)
    return out.index_add_(0, seg, src)
def _pad(x, pw):
    flat = tuple(v for pair in reversed(pw) for v in pair)
    return torch.nn.functional.pad(x, flat)

kernel_name = 'parallel_sum__mha_block__moe_arch_mod__prompt'

def setup_inputs():

    _w = (lambda a: (lambda t: t.to(torch.bfloat16) if t.is_floating_point() else t)(torch.as_tensor(a)))
    def _A_setup():
        B, S, D, H = 1, 2048, 640, 32
        return {
            "x": _w((lambda *s: torch.randn(*s, dtype=torch.bfloat16) * 0.05)(B, S, D)),
            "wqkv": _w((lambda *s: torch.randn(*s, dtype=torch.bfloat16) * 0.1)(D, 3 * D)),
            "wo": _w((lambda *s: torch.randn(*s, dtype=torch.bfloat16) * 0.05)(D, D)),
        }
    _A_in = _A_setup()

    def _B_setup():
        B, S, D, F, C = 1, 2048, 640, 1536, 2
        return {
            "x": _w((lambda *s: torch.randn(*s, dtype=torch.bfloat16) * 0.05)(B, S, D)),
            "w_r": _w((lambda *s: torch.randn(*s, dtype=torch.bfloat16) * 3.2)(D)),
            "w_gate": _w((lambda *s: torch.randn(*s, dtype=torch.bfloat16) * 0.1)(D, F)),
            "w_up": _w((lambda *s: torch.randn(*s, dtype=torch.bfloat16) * 0.1)(D, F)),
            "w_down": _w((lambda *s: torch.randn(*s, dtype=torch.bfloat16) * 0.1)(F, D)),
        }
    _B_in = _B_setup()

    return {
        "A_x": _A_in["x"],
        "A_wqkv": _A_in["wqkv"],
        "A_wo": _A_in["wo"],
        "B_x": _B_in["x"],
        "B_w_r": _B_in["w_r"],
        "B_w_gate": _B_in["w_gate"],
        "B_w_up": _B_in["w_up"],
        "B_w_down": _B_in["w_down"],
    }

def reference(A_x, A_wqkv, A_wo, B_x, B_w_r, B_w_gate, B_w_up, B_w_down):
    def _A_ref(x, wqkv, wo):
        B, S, D = x.shape
        H = 32
        Dh = D // H
        qkv = (lambda x, *d: x.permute(*d))((x @ wqkv).reshape(B, S, 3, H, Dh), 2, 0, 3, 1, 4)
        q, k, v = qkv[0], qkv[1], qkv[2]
        scores = torch.einsum("bhqd,bhkd->bhqk", q, k) * (Dh ** -0.5)
        p = _softmax(scores, axis=-1)
        o = torch.einsum("bhqk,bhkd->bhqd", p, v)
        return (lambda x, *d: x.permute(*d))(o, 0, 2, 1, 3).reshape(B, S, D) @ wo

    def _B_ref(x, w_r, w_gate, w_up, w_down):
        B, S, D = x.shape
        C = 2
        r = x @ w_r
        idx = torch.argsort(-r, axis=-1)[:, :C]
        idx_e = (lambda x, n, axis: torch.repeat_interleave(x, n, dim=axis))(idx.reshape(B, C, 1), D, axis=2)
        x_sel = (lambda x, i, axis: torch.take_along_dim(x, i, dim=axis))(x, idx_e, axis=1)
        g = _silu(x_sel @ w_gate)
        u = x_sel @ w_up
        y = (g * u) @ w_down
        r_sel = _sigmoid((lambda x, i, axis: torch.take_along_dim(x, i, dim=axis))(r, idx, axis=1))
        y = y * r_sel.reshape(B, C, 1)
        b_off = (torch.arange(B) * S).reshape(B, 1)
        flat_idx = (idx + b_off).reshape(B * C)
        zero = (x * 0.0).reshape(B * S, D)
        upd = _scatter_add(zero, flat_idx, y.reshape(B * C, D), axis=0)
        return x + upd.reshape(B, S, D)

    x = A_x
    xn = _layernorm(x, axis=-1)
    return x + _A_ref(xn, A_wqkv, A_wo) + _B_ref(xn, B_w_r, B_w_gate, B_w_up, B_w_down)
```

```python
NAME = "parallel_sum__mha_block__moe_arch_mod__prompt"

S, D, H, DH, F = 2048, 640, 32, 20, 1536

KA_X, KA_WQKV, KA_WO, KA_BX, KA_WR, KA_WG, KA_WU, KA_WD, KA_OUT, KA_DBG, KA_WS = [8 * i for i in range(11)]

QT_BYTES = 1280
KV_BYTES = 2624
Q_HEAD = 64 * QT_BYTES
KV_HEAD = 64 * KV_BYTES
WS_Q = 0
WS_KV = WS_Q + H * Q_HEAD
WS_OM = WS_KV + H * KV_HEAD
OM_BYTES = 64 * H * 1024
WS_OT = WS_OM + OM_BYTES
OT_BYTES = 64 * H * 256
WS_STAT = WS_OT + OT_BYTES
WS_R = WS_STAT + S * 8
WS_KEY = WS_R + S * 4
WS_CSP = WS_KEY + S * 4
CSP_BYTES = 16 * 16 * 512
WS_CAND = WS_CSP + CSP_BYTES
WS_HID = WS_CAND + 256
WS_Y = WS_HID + 8192
WS_IDX = WS_Y + 8192
WS_END = WS_IDX + 256

QSCALE = (DH ** -0.5) * 1.4426950408889634


def f32bits(x):
    import struct
    return struct.unpack("<I", struct.pack("<f", x))[0]


def vr(a, n=1):
    return f"v{a}" if n == 1 else f"v[{a}:{a + n - 1}]"


def sr(a, n=1):
    return f"s{a}" if n == 1 else f"s[{a}:{a + n - 1}]"


class Asm:
    def __init__(self):
        self.lines = []

    def __call__(self, text):
        for ln in text.strip("\n").split("\n"):
            ln = ln.strip()
            if not ln:
                continue
            if ln.endswith(":"):
                self.lines.append(ln)
            else:
                self.lines.append("    " + ln)

    def label(self, name):
        self.lines.append(name + ":")

    def raw(self, text):
        self.lines.append(text)

    def text(self):
        return "\n".join(self.lines) + "\n"

    def begin_kernel(self, name):
        self.raw(".text")
        self.raw(f".globl {name}")
        self.raw(".p2align 8")
        self.raw(f".type {name},@function")
        self.raw(f"{name}:")

    def descriptor(self, name, vgpr, sgpr=102, accum=None):
        accum = accum if accum is not None else (vgpr + 3) // 4 * 4
        self.raw('.section .rodata,"a"')
        self.raw(".p2align 6")
        self.raw(f".amdhsa_kernel {name}")
        self.raw(f"  .amdhsa_next_free_vgpr {vgpr}")
        self.raw(f"  .amdhsa_next_free_sgpr {sgpr}")
        self.raw(f"  .amdhsa_accum_offset {accum}")
        self.raw("  .amdhsa_group_segment_fixed_size 0")
        self.raw("  .amdhsa_kernarg_size 88")
        self.raw("  .amdhsa_user_sgpr_count 2")
        self.raw("  .amdhsa_user_sgpr_kernarg_segment_ptr 1")
        self.raw("  .amdhsa_system_sgpr_workgroup_id_x 1")
        self.raw("  .amdhsa_float_denorm_mode_32 3")
        self.raw(".end_amdhsa_kernel")

    def srd(self, s, ptr, off, size):
        if isinstance(off, int) and off == 0:
            self(f"s_mov_b32 s{s}, s{ptr}\ns_mov_b32 s{s + 1}, s{ptr + 1}")
        else:
            o = off if isinstance(off, str) else hex(off)
            self(f"s_add_u32 s{s}, s{ptr}, {o}\ns_addc_u32 s{s + 1}, s{ptr + 1}, 0")
        self(f"s_mov_b32 s{s + 2}, {hex(size)}\ns_mov_b32 s{s + 3}, 0x00020000")


HEADER = """; Kernarg layout for this problem (88 bytes, ptrs only, base s[0:1]):
"""
```

```python
from common import *

ONES = 0x3f803f80


def wg_map(a, s_tt, s_hp, tmp):
    a(f"""
    s_and_b32 s{tmp}, s2, 7
    s_lshr_b32 s{tmp + 1}, s2, 3
    s_and_b32 s{s_tt}, s{tmp}, 3
    s_lshl_b32 s{s_tt}, s{s_tt}, 2
    s_and_b32 s{s_hp}, s{tmp + 1}, 3
    s_add_u32 s{s_tt}, s{s_tt}, s{s_hp}
    s_lshr_b32 s{s_hp}, s{tmp}, 2
    s_lshl_b32 s{s_hp}, s{s_hp}, 3
    s_lshr_b32 s{tmp + 1}, s{tmp + 1}, 2
    s_add_u32 s{s_hp}, s{s_hp}, s{tmp + 1}
    """)


def half_wave_sum(a, regs):
    for ctl in ("row_shr:1", "row_shr:2", "row_shr:4", "row_shr:8"):
        for r in regs:
            a(f"v_add_f32_dpp v{r}, v{r}, v{r} {ctl} row_mask:0xf bank_mask:0xf")
        if len(regs) < 3:
            a("s_nop 1")
    for r in regs:
        a(f"v_add_f32_dpp v{r}, v{r}, v{r} row_bcast:15 row_mask:0xa bank_mask:0xf")


def gen_k0(a, name="stats_kernel"):
    S_TT, S_HP, S_W = 24, 25, 26
    a.begin_kernel(name)
    a(f"""
    s_cmp_ge_u32 s2, 256
    s_cbranch_scc1 L_k0_end
    s_load_dwordx4 s[4:7], s[0:1], {KA_X}
    s_load_dwordx2 s[36:37], s[0:1], {KA_WR}
    s_load_dwordx2 s[38:39], s[0:1], {KA_WS}
    v_lshrrev_b32 v1, 6, v0
    v_and_b32 v2, 63, v0
    v_readfirstlane_b32 s{S_W}, v1
    """)
    wg_map(a, S_TT, S_HP, 28)
    a("s_waitcnt lgkmcnt(0)")
    a.srd(8, 4, 0, S * D * 2)
    a.srd(12, 6, 0, D * 3 * D * 2)
    a.srd(16, 36, 0, D * 2)
    a.srd(20, 38, WS_STAT, WS_CAND - WS_STAT)
    a(f"""
    v_and_b32 v3, 31, v2
    v_lshrrev_b32 v4, 5, v2
    s_lshl_b32 s28, s{S_TT}, 7
    s_lshl_b32 s29, s{S_HP}, 3
    s_add_u32 s28, s28, s29
    s_lshl_b32 s29, s{S_W}, 1
    s_add_u32 s28, s28, s29
    v_add_u32 v5, s28, v4
    v_mul_u32_u24 v6, 1280, v5
    v_lshlrev_b32 v7, 4, v3
    v_lshlrev_b32 v8, 3, v3
    v_add_u32 v8, 1024, v8
    v_add_u32 v9, v6, v7
    v_add_u32 v10, v6, v8
    buffer_load_dwordx4 v[12:15], v9, s[8:11], 0 offen
    buffer_load_dwordx4 v[16:19], v9, s[8:11], 0 offen offset:512
    buffer_load_dwordx2 v[20:21], v10, s[8:11], 0 offen
    buffer_load_dwordx4 v[24:27], v7, s[16:19], 0 offen
    buffer_load_dwordx4 v[28:31], v7, s[16:19], 0 offen offset:512
    buffer_load_dwordx2 v[32:33], v8, s[16:19], 0 offen
    """)
    a(f"""
    v_mov_b32 v41, 20
    v_cmp_le_u32 vcc, v41, v2
    v_mov_b32 v42, 40
    v_cmp_le_u32 s[30:31], v42, v2
    s_nop 0
    v_cndmask_b32 v40, 0, 1, vcc
    v_cndmask_b32 v43, 0, 1, s[30:31]
    v_add_u32 v40, v40, v43
    v_mul_u32_u24 v43, 20, v40
    v_sub_u32 v43, v2, v43
    v_mul_u32_u24 v40, 1280, v40
    v_lshl_add_u32 v40, v43, 2, v40
    v_mov_b32 v43, {0x10000000}
    v_cmp_gt_u32 vcc, 60, v2
    s_mul_i32 s28, s{S_TT}, 40
    s_mul_i32 s29, s{S_W}, 10
    v_cndmask_b32 v40, v43, v40, vcc
    s_add_u32 s28, s28, s29
    s_mul_i32 s28, s28, 3840
    s_mul_i32 s29, s{S_HP}, 80
    s_add_u32 s28, s28, s29
    """)
    for i in range(10):
        a(f"buffer_load_dword v{44 + i}, v40, s[12:15], s28 offen")
        if i < 9:
            a("s_add_u32 s28, s28, 3840")
    a(f"""
    v_mov_b32 v34, 0
    v_mov_b32 v35, 0
    v_mov_b32 v36, 0
    v_mov_b32 v37, 0
    s_mov_b32 s30, {ONES}
    s_waitcnt vmcnt(10)
    """)
    for i in range(10):
        a(f"v_dot2_f32_bf16 v34, v{12 + i}, s30, v34")
        a(f"v_dot2_f32_bf16 v35, v{12 + i}, v{12 + i}, v35")
        a(f"v_dot2_f32_bf16 v36, v{12 + i}, v{24 + i}, v36")
        a(f"v_dot2_f32_bf16 v37, v{24 + i}, s30, v37")
    a("s_nop 3")
    half_wave_sum(a, [34, 35, 36, 37])
    a(f"""
    s_mov_b32 s30, {hex(f32bits(1.0 / 640))}
    v_mul_f32 v34, s30, v34
    v_mul_f32 v35, s30, v35
    v_fma_f32 v35, -v34, v34, v35
    v_max_f32 v35, 0, v35
    v_add_f32 v35, {hex(f32bits(1e-5))}, v35
    v_rsq_f32 v35, v35
    v_fma_f32 v36, -v34, v37, v36
    v_mul_f32 v36, v36, v35
    v_ashrrev_i32 v38, 31, v36
    v_or_b32 v38, 0x80000000, v38
    v_xor_b32 v38, v38, v36
    v_and_b32 v38, 0xfffff800, v38
    v_or_b32 v38, v38, v5
    v_lshlrev_b32 v39, 3, v5
    v_lshlrev_b32 v11, 2, v5
    v_cmp_eq_u32 vcc, 31, v3
    s_and_saveexec_b64 s[32:33], vcc
    buffer_store_dwordx2 v[34:35], v39, s[20:23], 0 offen
    s_mov_b32 s34, {WS_R - WS_STAT}
    s_mov_b32 s35, {WS_KEY - WS_STAT}
    buffer_store_dword v36, v11, s[20:23], s34 offen
    buffer_store_dword v38, v11, s[20:23], s35 offen
    s_mov_b64 exec, s[32:33]
    """)
    a(f"""
    v_mov_b32 v56, 0
    v_mov_b32 v57, 0
    s_mov_b32 s30, 0x00003f80
    s_mov_b32 s31, 0x3f800000
    s_waitcnt vmcnt(3)
    """)
    for i in range(10):
        a(f"v_dot2_f32_bf16 v56, v{44 + i}, s30, v56")
        a(f"v_dot2_f32_bf16 v57, v{44 + i}, s31, v57")
    a(f"""
    s_lshl_b32 s28, s{S_W}, 9
    v_lshlrev_b32 v58, 3, v2
    v_add_u32 v59, s28, v58
    s_nop 2
    ds_write_b64 v59, v[56:57]
    s_waitcnt lgkmcnt(0)
    s_barrier
    s_cmp_lg_u32 s{S_W}, 0
    s_cbranch_scc1 L_k0_done
    ds_read_b64 v[60:61], v58
    ds_read_b64 v[62:63], v58 offset:512
    ds_read_b64 v[64:65], v58 offset:1024
    ds_read_b64 v[66:67], v58 offset:1536
    s_waitcnt lgkmcnt(0)
    v_add_f32 v60, v60, v62
    v_add_f32 v61, v61, v63
    v_add_f32 v64, v64, v66
    v_add_f32 v65, v65, v67
    v_add_f32 v60, v60, v64
    v_add_f32 v61, v61, v65
    s_lshl_b32 s28, s{S_HP}, 4
    s_add_u32 s28, s28, s{S_TT}
    s_lshl_b32 s28, s28, 9
    s_add_u32 s28, s28, {WS_CSP - WS_STAT}
    buffer_store_dwordx2 v[60:61], v58, s[20:23], s28 offen
    """)
    a.label("L_k0_done")
    a("s_waitcnt vmcnt(0)")
    a.label("L_k0_end")
    a("s_endpgm")
```

```python
from common import *
from k0 import wg_map

MF = "v_mfma_f32_32x32x16_bf16"
SLOT = 32768
NSLOT = 4
LDS_CS = NSLOT * SLOT
LDS_BYTES = LDS_CS + 512
VT_ROW = 88
VT_BASE = 2 * SLOT

CH = [[0, 1, 2, 3, 5, 6, 7, 8], [10, 11, 12, 13, 15, 16, 17, 18],
      [4, 9, 14, 19, 20, 21, 22, 23], [24, 25, 26, 27, 28, 29, 30, 31]]

S_TT, S_HP, S_W = 24, 25, 26
S_X, S_WQ, S_ST, S_QI, S_KV = 8, 12, 16, 20, 44
S_XOFF, S_WOFF, S_LDSW = 30, 31, 32
ACC = 64
FR = 32
V_XA, V_XB, V_WA, V_WB = 8, 12, 16, 18
V_DX0, V_DX1, V_DW = 20, 21, 22
V_STAT = 24


def lds_table(a, dst, lane_expr_regs, table, tmp):
    idx = lane_expr_regs
    a(f"v_mov_b32 v{dst}, {table[0]}")
    for i in range(1, len(table)):
        a(f"v_cmp_eq_u32 vcc, {i}, v{idx}\nv_mov_b32 v{tmp}, {table[i]}\ns_nop 0\nv_cndmask_b32 v{dst}, v{dst}, v{tmp}, vcc")


def dma_stage(a, stage, emit=None):
    slot = (stage % NSLOT) * SLOT
    out = []
    for q in range(4):
        def fx(q=q):
            a(f"s_add_u32 m0, s{S_LDSW}, {slot + q * 1024}")
            a(f"s_add_u32 s33, s{S_XOFF}, {stage * 128 + q * 10240}")
            a(f"buffer_load_dwordx4 v{V_DX0 + (q & 1)}, s[{S_X}:{S_X + 3}], s33 offen lds")
        out.append(fx)
    for q in range(4):
        def fw(q=q):
            a(f"s_add_u32 m0, s{S_LDSW}, {slot + 16384 + q * 1024}")
            a(f"s_add_u32 s33, s{S_WOFF}, {(stage * 64 + 4 * q) * 3840}")
            a(f"buffer_load_dwordx4 v{V_DW}, s[{S_WQ}:{S_WQ + 3}], s33 offen lds")
        out.append(fw)
    return out


def reads(a, stage, ks, fset):
    slot = stage % NSLOT
    hi = slot >= 2
    base = (slot & 1) * SLOT
    xa = (V_XB if hi else V_XA) + ks
    wa = V_WB if hi else V_WA
    f = FR + 16 * fset
    a(f"ds_read_b128 {vr(f, 4)}, v{xa} offset:{base}")
    a(f"ds_read_b128 {vr(f + 4, 4)}, v{xa} offset:{base + 4096}")
    for b in range(2):
        for jp in range(2):
            a(f"ds_read_b64_tr_b16 {vr(f + 8 + 4 * b + 2 * jp, 2)}, v{wa + b} offset:{base + ks * 4096 + jp * 1024}")


def mfmas(a, fset, between=None):
    f = FR + 16 * fset
    n = 0
    for T in range(2):
        for B in range(2):
            acc = vr(ACC + 32 * T + 16 * B, 16)
            a(f"{MF} {acc}, {vr(f + 8 + 4 * B, 4)}, {vr(f + 4 * T, 4)}, {acc}")
            if between:
                between(n)
            n += 1


def ln_fix(a, T, B, cs, scale_reg):
    acc = ACC + 32 * T + 16 * B
    for r in range(0, 16, 2):
        sc = scale_reg(r // 4)
        a(f"v_pk_mul_f32 {vr(FR + 16, 2)}, {vr(cs + r, 2)}, {vr(sc, 2)} op_sel:[0,1] op_sel_hi:[1,1]")
        a(f"v_pk_fma_f32 {vr(acc + r, 2)}, {vr(acc + r, 2)}, {vr(sc, 2)}, {vr(FR + 16, 2)} op_sel_hi:[1,0,1]")
    for r in range(8):
        a(f"v_cvt_pk_bf16_f32 v{acc + r}, v{acc + 2 * r}, v{acc + 2 * r + 1}")


def gen_k1(a, name="qkv_kernel"):
    a.begin_kernel(name)
    a(f"""
    s_cmp_ge_u32 s2, 256
    s_cbranch_scc1 L_k1_end
    s_load_dwordx4 s[4:7], s[0:1], {KA_X}
    s_load_dwordx2 s[38:39], s[0:1], {KA_WS}
    v_lshrrev_b32 v1, 6, v0
    v_and_b32 v2, 63, v0
    v_readfirstlane_b32 s{S_W}, v1
    """)
    wg_map(a, S_TT, S_HP, 28)
    a(f"""
    v_lshrrev_b32 v3, 3, v2
    v_mul_u32_u24 v3, 1280, v3
    v_lshrrev_b32 v4, 4, v2
    v_and_b32 v5, 7, v2
    v_xor_b32 v5, v5, v4
    v_lshl_add_u32 v{V_DX0}, v5, 4, v3
    v_xor_b32 v{V_DX1}, 64, v{V_DX0}
    v_and_b32 v5, 15, v2
    v_lshlrev_b32 v6, 2, v4
    v_xor_b32 v5, v5, v6
    v_min_u32 v5, 14, v5
    v_mul_u32_u24 v6, 52, v5
    v_lshrrev_b32 v6, 8, v6
    v_mul_u32_u24 v7, 5, v6
    v_sub_u32 v7, v5, v7
    v_mul_u32_u24 v6, 1280, v6
    v_lshl_add_u32 v6, v7, 4, v6
    v_mul_u32_u24 v7, 3840, v4
    v_add_u32 v{V_DW}, v6, v7
    s_waitcnt lgkmcnt(0)
    """)
    a.srd(S_X, 4, 0, S * D * 2)
    a.srd(S_WQ, 6, 0, D * 3 * D * 2)
    a.srd(S_ST, 38, WS_STAT, WS_CAND - WS_STAT)
    a.srd(S_QI, 38, WS_Q, H * Q_HEAD)
    a.srd(S_KV, 38, WS_KV, H * KV_HEAD)
    a(f"""
    s_lshl_b32 s28, s{S_TT}, 7
    s_lshl_b32 s29, s{S_W}, 5
    s_add_u32 s28, s28, s29
    s_mul_i32 s{S_XOFF}, s28, 1280
    s_mul_i32 s28, s{S_W}, {16 * 3840}
    s_mul_i32 s29, s{S_HP}, 80
    s_add_u32 s{S_WOFF}, s28, s29
    s_lshl_b32 s{S_LDSW}, s{S_W}, 12
    """)
    a(f"""
    v_and_b32 v3, 31, v2
    s_and_b32 s28, s{S_W}, 1
    s_lshl_b32 s28, s28, 6
    s_lshl_b32 s29, s{S_TT}, 7
    s_add_u32 s28, s28, s29
    v_add_u32 v4, s28, v3
    v_lshlrev_b32 v4, 3, v4
    buffer_load_dwordx2 v[{V_STAT}:{V_STAT + 1}], v4, s[{S_ST}:{S_ST + 3}], 0 offen
    buffer_load_dwordx2 v[{V_STAT + 2}:{V_STAT + 3}], v4, s[{S_ST}:{S_ST + 3}], 0 offen offset:256
    v_lshlrev_b32 v4, 2, v2
    s_lshl_b32 s28, s{S_HP}, 13
    s_add_u32 s28, s28, {WS_CSP - WS_STAT}
    s_lshl_b32 s29, s{S_W}, 11
    s_add_u32 s28, s28, s29
    """)
    for i in range(4):
        a(f"buffer_load_dword v{ACC + 2 * i}, v4, s[{S_ST}:{S_ST + 3}], s28 offen offset:{512 * i}")
        a(f"buffer_load_dword v{ACC + 2 * i + 1}, v4, s[{S_ST}:{S_ST + 3}], s28 offen offset:{512 * i + 256}")
    for st in range(3):
        for f in dma_stage(a, st):
            f()
    a(f"""
    v_and_b32 v3, 31, v2
    v_lshrrev_b32 v4, 5, v2
    v_lshrrev_b32 v5, 1, v3
    v_and_b32 v5, 7, v5
    s_and_b32 s28, s{S_W}, 1
    s_lshl_b32 s28, s28, 13
    v_lshlrev_b32 v6, 7, v3
    v_add_u32 v6, s28, v6
    """)
    for ks in range(4):
        a(f"v_add_u32 v7, {2 * ks}, v4\nv_xor_b32 v7, v7, v5\nv_lshl_add_u32 v{V_XA + ks}, v7, 4, v6")
        a(f"v_add_u32 v{V_XB + ks}, 0x10000, v{V_XA + ks}")
    a(f"""
    v_lshrrev_b32 v5, 4, v2
    v_and_b32 v5, 1, v5
    v_and_b32 v6, 3, v2
    v_lshl_add_u32 v5, v5, 2, v6
    v_bfe_u32 v6, v2, 2, 2
    v_lshl_add_u32 v7, v4, 3, v6
    v_lshlrev_b32 v7, 8, v7
    v_add_u32 v7, 16384, v7
    s_lshr_b32 s28, s{S_W}, 1
    """)
    a(f"s_cmp_eq_u32 s28, 0\ns_cbranch_scc0 L_k1_tab1")
    for variant in range(2):
        if variant == 1:
            a.label("L_k1_tab1")
        for b in range(2):
            lds_table(a, 28, 5, CH[2 * variant + b], 29)
            a(f"""
            v_lshrrev_b32 v29, 1, v28
            v_lshlrev_b32 v30, 2, v6
            v_xor_b32 v29, v29, v30
            v_and_b32 v28, 1, v28
            v_lshlrev_b32 v28, 3, v28
            v_lshl_add_u32 v28, v29, 4, v28
            v_add_u32 v{V_WA + b}, v28, v7
            v_add_u32 v{V_WB + b}, 0x10000, v{V_WA + b}
            """)
        if variant == 0:
            a("s_branch L_k1_tabdone")
    a.label("L_k1_tabdone")
    a("s_waitcnt vmcnt(24)")
    for h in range(2):
        a(f"v_add_f32 v{ACC + h}, v{ACC + h}, v{ACC + 2 + h}")
        a(f"v_add_f32 v{ACC + 4 + h}, v{ACC + 4 + h}, v{ACC + 6 + h}")
    for h in range(2):
        a(f"v_add_f32 v{ACC + h}, v{ACC + h}, v{ACC + 4 + h}")
    a(f"""
    v_lshlrev_b32 v4, 2, v2
    s_lshl_b32 s28, s{S_W}, 9
    s_add_u32 s28, s28, {3 * SLOT}
    v_add_u32 v4, s28, v4
    ds_write_b32 v4, v{ACC}
    ds_write_b32 v4, v{ACC + 1} offset:256
    s_waitcnt lgkmcnt(0)
    s_barrier
    v_lshlrev_b32 v4, 2, v0
    v_add_u32 v5, {3 * SLOT}, v4
    v_cmp_gt_u32 vcc, 128, v0
    s_and_saveexec_b64 s[34:35], vcc
    s_cbranch_execz L_k1_csdone
    ds_read_b32 v28, v5
    ds_read_b32 v29, v5 offset:512
    ds_read_b32 v30, v5 offset:1024
    ds_read_b32 v31, v5 offset:1536
    s_waitcnt lgkmcnt(0)
    v_add_f32 v28, v28, v29
    v_add_f32 v30, v30, v31
    v_add_f32 v28, v28, v30
    v_add_u32 v4, {LDS_CS}, v4
    ds_write_b32 v4, v28
    s_waitcnt lgkmcnt(0)
    """)
    a.label("L_k1_csdone")
    a("s_mov_b64 exec, s[34:35]")
    for r in range(64):
        a(f"v_mov_b32 v{ACC + r}, 0")
    a("s_waitcnt vmcnt(16)\ns_barrier")
    reads(a, 0, 0, 0)
    for st in range(10):
        for ks in range(4):
            cur, nxt = ks & 1, (ks + 1) & 1
            if ks < 3:
                reads(a, st, ks + 1, nxt)
                a("s_waitcnt lgkmcnt(6)")
                mfmas(a, cur)
            else:
                if st < 9:
                    a(f"s_waitcnt vmcnt({8 if st < 8 else 0})\ns_barrier")
                    reads(a, st + 1, 0, nxt)
                    a("s_waitcnt lgkmcnt(6)")
                else:
                    a("s_waitcnt lgkmcnt(0)")
                d = dma_stage(a, st + 3) if st + 3 < 10 else []

                def between(n, d=d):
                    for f in d[2 * n:2 * n + 2]:
                        f()
                mfmas(a, cur, between)
    a(f"""
    s_mov_b32 s28, {hex(f32bits(QSCALE))}
    v_mov_b32 v8, v{V_STAT + 1}
    v_mul_f32 v9, v{V_STAT}, v{V_STAT + 1}
    v_mov_b32 v10, v{V_STAT + 3}
    v_mul_f32 v11, v{V_STAT + 2}, v{V_STAT + 3}
    v_sub_f32 v9, 0, v9
    v_sub_f32 v11, 0, v11
    v_mul_f32 v12, s28, v8
    v_mul_f32 v13, s28, v9
    v_mul_f32 v14, s28, v10
    v_mul_f32 v15, s28, v11
    v_and_b32 v3, 31, v2
    v_lshrrev_b32 v4, 5, v2
    v_lshlrev_b32 v5, 4, v2
    s_lshr_b32 s28, s{S_W}, 1
    s_and_b32 s29, s{S_W}, 1
    s_lshl_b32 s34, s{S_TT}, 2
    s_lshl_b32 s29, s29, 1
    s_add_u32 s34, s34, s29
    s_lshl_b32 s35, s{S_HP}, 1
    s_cmp_eq_u32 s28, 0
    s_cbranch_scc0 L_k1_epi1
    """)
    CS = 96 + 32
    for variant in range(2):
        if variant == 1:
            a.label("L_k1_epi1")
        for b in range(2):
            B = 2 * variant + b
            for quad in range(4):
                c0, c1 = CH[B][2 * quad], CH[B][2 * quad + 1]
                a(f"v_mul_u32_u24 v6, {(c1 - c0) * 16}, v4")
                a(f"v_add_u32 v6, {LDS_CS}, v6")
                a(f"ds_read_b128 {vr(CS + 16 * b + 4 * quad, 4)}, v6 offset:{c0 * 16}")
        a("s_waitcnt lgkmcnt(0)")
        if variant == 0:
            for T in range(2):
                ln_fix(a, T, 0, CS, lambda q, T=T: 12 + 2 * T)
                ln_fix(a, T, 1, CS + 16, lambda q, T=T: 8 + 2 * T)
                for hd in range(2):
                    a(f"""
                    s_add_u32 s28, s35, {hd}
                    s_lshl_b32 s28, s28, 6
                    s_add_u32 s28, s28, s34
                    s_add_u32 s28, s28, {T}
                    s_mul_i32 s29, s28, {QT_BYTES}
                    s_mul_i32 s33, s28, {KV_BYTES}
                    """)
                    a(f"buffer_store_dwordx4 {vr(ACC + 32 * T + 4 * hd, 4)}, v5, s[{S_QI}:{S_QI + 3}], s29 offen sc1")
                    a(f"buffer_store_dwordx4 {vr(ACC + 32 * T + 16 + 4 * hd, 4)}, v5, s[{S_KV}:{S_KV + 3}], s33 offen sc1")
            a("s_branch L_k1_done")
        else:
            a(f"""
            v_mul_u32_u24 v6, {64 * QT_BYTES}, v4
            v_mul_u32_u24 v7, {64 * KV_BYTES}, v4
            v_lshlrev_b32 v16, 3, v3
            v_add_u32 v16, 1024, v16
            v_add_u32 v6, v6, v16
            v_add_u32 v7, v7, v16
            s_and_b32 s36, s{S_W}, 1
            s_mul_i32 s36, s36, {64 * VT_ROW}
            s_add_u32 s36, s36, {VT_BASE}
            v_mul_u32_u24 v16, {VT_ROW}, v3
            v_add_u32 v16, s36, v16
            v_lshl_add_u32 v17, v4, 3, v16
            v_mov_b32 v18, 0x3f80
            v_mov_b32 v19, 0
            ds_write_b64 v16, v[18:19] offset:80
            ds_write_b64 v16, v[18:19] offset:{80 + 32 * VT_ROW}
            """)
            for T in range(2):
                ln_fix(a, T, 0, CS, lambda q, T=T: (12 if q == 0 else 8) + 2 * T)
                ln_fix(a, T, 1, CS + 16, lambda q, T=T: 8 + 2 * T)
                p2 = ACC + 32 * T
                p3 = ACC + 32 * T + 16
                a(f"""
                s_lshl_b32 s28, s35, 6
                s_add_u32 s28, s28, s34
                s_add_u32 s28, s28, {T}
                s_mul_i32 s29, s28, {QT_BYTES}
                s_mul_i32 s33, s28, {KV_BYTES}
                """)
                a(f"buffer_store_dwordx2 {vr(p2, 2)}, v6, s[{S_QI}:{S_QI + 3}], s29 offen sc1")
                a(f"buffer_store_dwordx2 {vr(p2 + 2, 2)}, v7, s[{S_KV}:{S_KV + 3}], s33 offen sc1")
                for quad in (2, 3):
                    a(f"ds_write_b64 v17, {vr(p2 + 2 * quad, 2)} offset:{T * 32 * VT_ROW + 16 * (quad - 2)}")
                for quad in range(3):
                    a(f"ds_write_b64 v17, {vr(p3 + 2 * quad, 2)} offset:{T * 32 * VT_ROW + 32 + 16 * quad}")
            a(f"""
            v_bfe_u32 v16, v2, 2, 2
            v_lshl_add_u32 v16, v4, 2, v16
            v_mul_u32_u24 v16, {VT_ROW}, v16
            v_add_u32 v16, s36, v16
            """)
            a(f"""
            v_bfe_u32 v17, v2, 4, 1
            v_and_b32 v18, 3, v2
            v_lshlrev_b32 v19, 3, v18
            v_cmp_eq_u32 vcc, 0, v18
            v_mov_b32 v20, 80
            v_mov_b32 v21, 32
            v_mov_b32 v22, 72
            v_cndmask_b32 v21, v20, v21, vcc
            v_cndmask_b32 v22, v20, v22, vcc
            v_cmp_eq_u32 vcc, 0, v17
            v_add_u32 v20, 40, v19
            s_nop 0
            v_cndmask_b32 v21, v21, v19, vcc
            v_cndmask_b32 v22, v22, v20, vcc
            v_add_u32 v21, v21, v16
            v_add_u32 v22, v22, v16
            v_mul_u32_u24 v16, 336, v4
            v_lshl_add_u32 v16, v3, 4, v16
            v_add_u32 v16, 1280, v16
            v_mov_b32 v17, 0x10000000
            v_cmp_gt_u32 vcc, 21, v3
            s_waitcnt lgkmcnt(0)
            s_nop 0
            v_cndmask_b32 v16, v17, v16, vcc
            """)
            for T in range(2):
                for hd in range(2):
                    dst = FR + 8 * hd
                    for j in range(2):
                        for sec in range(2):
                            a(f"ds_read_b64_tr_b16 {vr(dst + 4 * j + 2 * sec, 2)}, v{21 + hd} offset:{(T * 32 + 16 * j + 8 * sec) * VT_ROW}")
                for hd in range(2):
                    dst = FR + 8 * hd
                    a(f"""
                    s_add_u32 s28, s35, {hd}
                    s_lshl_b32 s28, s28, 6
                    s_add_u32 s28, s28, s34
                    s_add_u32 s28, s28, {T}
                    s_mul_i32 s33, s28, {KV_BYTES}
                    s_waitcnt lgkmcnt({4 * (1 - hd)})
                    """)
                    a(f"buffer_store_dwordx4 {vr(dst, 4)}, v16, s[{S_KV}:{S_KV + 3}], s33 offen sc1")
                    a(f"buffer_store_dwordx4 {vr(dst + 4, 4)}, v16, s[{S_KV}:{S_KV + 3}], s33 offen offset:672 sc1")
                if T == 0:
                    a("s_nop 1")
    a.label("L_k1_done")
    a("s_waitcnt vmcnt(0)")
    a.label("L_k1_end")
    a("s_endpgm")
```

```python
from common import *

VQ, VO, VS, VP, VKV = 8, 40, 104, 136, 152
V_LIN, V_KT, V_V, V_QT = 1, 2, 3, 4
S_Q, S_KV, S_OM, S_OT = 8, 12, 16, 20
S_W, S_HEAD, S_QB, S_KVOFF, S_CNT = 24, 25, 26, 27, 28
OOB = 0x10000000


def q_main(j): return vr(VQ + 8 * j, 4)
def q_tail(j): return vr(VQ + 8 * j + 4, 4)
def o_acc(j): return vr(VO + 16 * j, 16)
def s_buf(b): return VS + 16 * b
def p_buf(b): return VP + 8 * b
def k_main(st): return VKV + 16 * st
def k_tail(st): return VKV + 16 * st + 4
def v_0(st): return VKV + 16 * st + 8
def v_1(st): return VKV + 16 * st + 12


MF = "v_mfma_f32_32x32x16_bf16"


def exp_group(a, b, g):
    s, p = s_buf(b) + 4 * g, p_buf(b) + 2 * g
    for r in range(4):
        a(f"v_exp_f32 v{s + r}, v{s + r}")
    a(f"v_cvt_pk_bf16_f32 v{p}, v{s}, v{s + 1}")
    a(f"v_cvt_pk_bf16_f32 v{p + 1}, v{s + 2}, v{s + 3}")


def load_k(a, st, part):
    if part == 0:
        a(f"buffer_load_dwordx4 {vr(k_main(st), 4)}, v{V_LIN}, s[{S_KV}:{S_KV + 3}], s{S_KVOFF} offen")
    else:
        a(f"buffer_load_dwordx2 {vr(k_tail(st), 2)}, v{V_KT}, s[{S_KV}:{S_KV + 3}], s{S_KVOFF} offen")


def load_v(a, st, part):
    reg = v_0(st) if part == 0 else v_1(st)
    off = "" if part == 0 else " offset:672"
    a(f"buffer_load_dwordx4 {vr(reg, 4)}, v{V_V}, s[{S_KV}:{S_KV + 3}], s{S_KVOFF} offen{off}")


def phase(a, n, j, extra):
    cb = j & 1
    nb = cb ^ 1
    st_next = n % 4 if j < 3 else (n + 1) % 4
    jn = (j + 1) % 4
    st_prev = n % 4 if j > 0 else (n - 1) % 4
    jp = (j - 1) % 4
    sn = vr(s_buf(nb), 16)
    pp = p_buf(nb)

    def ex(slot):
        for f in extra.get(slot, ()):
            f()
    a(f"{MF} {sn}, {vr(k_main(st_next), 4)}, {q_main(jn)}, 0")
    ex(0)
    exp_group(a, cb, 0)
    a(f"{MF} {o_acc(jp)}, {vr(v_0(st_prev), 4)}, {vr(pp, 4)}, {o_acc(jp)}")
    ex(1)
    exp_group(a, cb, 1)
    a(f"{MF} {sn}, {vr(k_tail(st_next), 4)}, {q_tail(jn)}, {sn}")
    ex(2)
    exp_group(a, cb, 2)
    a(f"{MF} {o_acc(jp)}, {vr(v_1(st_prev), 4)}, {vr(pp + 4, 4)}, {o_acc(jp)}")
    ex(3)
    exp_group(a, cb, 3)


def tile(a, n, last_in_body, pad=False):
    ld = (n + 3) % 4
    ex0 = {0: [lambda: load_k(a, ld, 0)], 2: [lambda: load_k(a, ld, 1)]}
    ex1 = {0: [lambda: load_v(a, ld, 0)], 2: [lambda: load_v(a, ld, 1)],
           3: [lambda: a(f"s_add_u32 s{S_KVOFF}, s{S_KVOFF}, {KV_BYTES}")]}
    ex2 = {3: [lambda: a("s_waitcnt vmcnt(8)")]}
    ex3 = {}
    if pad:
        ex2[3].append(lambda: a("s_nop 0"))
    if last_in_body:
        ex3 = {1: [lambda: a(f"s_sub_u32 s{S_CNT}, s{S_CNT}, 1")], 3: [lambda: a(f"s_cmp_lg_u32 s{S_CNT}, 0")]}
        if pad:
            ex3 = {3: [lambda: a(f"s_sub_u32 s{S_CNT}, s{S_CNT}, 1"), lambda: a(f"s_cmp_lg_u32 s{S_CNT}, 0")]}
    phase(a, n, 0, ex0)
    phase(a, n, 1, ex1)
    phase(a, n, 2, ex2)
    phase(a, n, 3, ex3)


def exchange_and_store(a, wk):
    keep = [0, 1] if wk == 0 else [2, 3]
    send = [2, 3] if wk == 0 else [0, 1]
    T = 216
    a(f"""
    s_mul_i32 s29, s{S_W}, 6144
    v_add_u32 v5, s29, v{V_LIN}
    s_xor_b32 s30, s{S_W}, 2
    s_mul_i32 s30, s30, 6144
    v_add_u32 v6, s30, v{V_LIN}
    """)
    for jj, j in enumerate(send):
        for g in range(3):
            a(f"ds_write_b128 v5, {vr(VO + 16 * j + 4 * g, 4)} offset:{(jj * 3 + g) * 1024}")
    a("s_waitcnt lgkmcnt(0)\ns_barrier")
    for jj, j in enumerate(keep):
        for g in range(3):
            a(f"ds_read_b128 {vr(T + 12 * jj + 4 * g, 4)}, v6 offset:{(jj * 3 + g) * 1024}")
    for jj, j in enumerate(keep):
        o = VO + 16 * j
        t = T + 12 * jj
        a(f"s_waitcnt lgkmcnt({3 * (1 - jj)})")
        for r in range(12):
            a(f"v_add_f32 v{o + r}, v{o + r}, v{t + r}")
        a(f"v_mov_b32 v{t}, v{o + 8}\nv_mov_b32 v{t + 1}, v{o + 8}\ns_nop 1")
        a(f"v_permlane32_swap_b32 v{t}, v{t + 1}")
        a("s_nop 1")
        a(f"v_rcp_f32 v{t + 2}, v{t + 1}")
        a("s_nop 0")
        for r in range(12):
            a(f"v_mul_f32 v{o + r}, v{o + r}, v{t + 2}")
        for r in range(6):
            a(f"v_cvt_pk_bf16_f32 v{t + 4 + r}, v{o + 2 * r}, v{o + 2 * r + 1}")
        a(f"""
        s_add_u32 s31, s33, {j}
        s_lshl_b32 s31, s31, 5
        s_add_u32 s31, s31, s{S_HEAD}
        s_lshl_b32 s34, s31, 10
        s_lshl_b32 s35, s31, 8
        """)
        a(f"buffer_store_dwordx4 {vr(t + 4, 4)}, v{V_LIN}, s[{S_OM}:{S_OM + 3}], s34 offen")
        a(f"buffer_store_dwordx2 {vr(t + 8, 2)}, v7, s[{S_OT}:{S_OT + 3}], s35 offen")


STAMP_OFF = 48 << 20


def stamp(a, idx):
    b = 60 + 4 * idx
    a(f"s_memtime s[{b}:{b + 1}]\ns_memrealtime s[{b + 2}:{b + 3}]")


def stamp_store(a, n):
    a("s_waitcnt lgkmcnt(0)")
    a.srd(40, 4, STAMP_OFF, 1 << 20)
    a(f"s_lshl_b32 s44, s2, 3\ns_add_u32 s44, s44, s{S_W}\ns_lshl_b32 s44, s44, 7\nv_mov_b32 v5, s44")
    for i in range(n):
        b = 60 + 4 * i
        a(f"v_mov_b32 v8, s{b}\nv_mov_b32 v9, s{b + 1}\nv_mov_b32 v10, s{b + 2}\nv_mov_b32 v11, s{b + 3}")
        a(f"buffer_store_dwordx4 v[8:11], v5, s[40:43], 0 offen offset:{16 * i}\ns_nop 1")


def gen_k2(a, name="attn_kernel", pad=False, diag=False, zero=True):
    a.begin_kernel(name)
    a(f"""
    s_cmp_ge_u32 s2, 256
    s_cbranch_scc1 L_k2_end
    s_load_dwordx2 s[4:5], s[0:1], {KA_WS}
    """)
    if diag:
        stamp(a, 0)
    a(f"""
    v_lshrrev_b32 v5, 6, v0
    v_and_b32 v6, 63, v0
    v_readfirstlane_b32 s{S_W}, v5
    s_and_b32 s29, s2, 7
    s_lshr_b32 s30, s2, 3
    s_and_b32 s{S_QB}, s30, 7
    s_lshr_b32 s30, s30, 3
    s_lshl_b32 s29, s29, 2
    s_add_u32 s{S_HEAD}, s29, s30
    v_lshlrev_b32 v{V_LIN}, 4, v6
    v_and_b32 v7, 31, v6
    v_lshrrev_b32 v0, 5, v6
    v_lshlrev_b32 v{V_KT}, 3, v7
    v_add_u32 v{V_KT}, 1024, v{V_KT}
    v_min_u32 v{V_V}, 20, v7
    v_lshlrev_b32 v{V_V}, 4, v{V_V}
    v_mul_u32_u24 v5, 336, v0
    v_add_u32 v{V_V}, v{V_V}, v5
    v_add_u32 v{V_V}, 1280, v{V_V}
    v_cmp_eq_u32 vcc, 0, v0
    v_mov_b32 v5, {OOB}
    v_lshlrev_b32 v7, 3, v7
    v_cndmask_b32 v{V_QT}, v5, v{V_KT}, vcc
    v_cndmask_b32 v7, v5, v7, vcc
    """)
    if zero:
        a(f"""
        v_mov_b32 v{V_KT}, v{V_QT}
        v_and_b32 v0, 31, v6
        v_cmp_gt_u32 vcc, 21, v0
        s_nop 1
        v_cndmask_b32 v{V_V}, v5, v{V_V}, vcc
        """)
    a(f"""
    s_waitcnt lgkmcnt(0)
    s_mul_i32 s29, s{S_HEAD}, {Q_HEAD}
    s_add_u32 s29, s29, {WS_Q}
    """)
    a.srd(S_Q, 4, "s29", Q_HEAD)
    a(f"s_mul_i32 s29, s{S_HEAD}, {KV_HEAD}\ns_add_u32 s29, s29, {WS_KV}")
    a.srd(S_KV, 4, "s29", KV_HEAD)
    a.srd(S_OM, 4, WS_OM, OM_BYTES)
    a.srd(S_OT, 4, WS_OT, OT_BYTES)
    a(f"""
    s_and_b32 s29, s{S_W}, 1
    s_lshl_b32 s29, s29, 2
    s_lshl_b32 s33, s{S_QB}, 3
    s_add_u32 s33, s33, s29
    s_mul_i32 s30, s33, {QT_BYTES}
    s_lshr_b32 s29, s{S_W}, 1
    s_mul_i32 s{S_KVOFF}, s29, {32 * KV_BYTES}
    """)
    for part in range(2):
        load_k(a, 0, part)
    for j in range(4):
        a(f"buffer_load_dwordx4 {q_main(j)}, v{V_LIN}, s[{S_Q}:{S_Q + 3}], s30 offen")
        a(f"buffer_load_dwordx2 {vr(VQ + 8 * j + 4, 2)}, v{V_QT}, s[{S_Q}:{S_Q + 3}], s30 offen")
        a(f"s_add_u32 s30, s30, {QT_BYTES}")
    for part in range(2):
        load_v(a, 0, part)
    a(f"s_add_u32 s{S_KVOFF}, s{S_KVOFF}, {KV_BYTES}")
    for st in (1, 2):
        for part in range(2):
            load_k(a, st, part)
        for part in range(2):
            load_v(a, st, part)
        a(f"s_add_u32 s{S_KVOFF}, s{S_KVOFF}, {KV_BYTES}")
    for j in range(4):
        a(f"v_mov_b32 v{VQ + 8 * j + 6}, 0\nv_mov_b32 v{VQ + 8 * j + 7}, 0")
    for st in range(4):
        a(f"v_mov_b32 v{k_tail(st) + 2}, 0x3f80\nv_mov_b32 v{k_tail(st) + 3}, 0")
    for r in range(64):
        a(f"v_mov_b32 v{VO + r}, 0")
    for r in range(8):
        a(f"v_mov_b32 v{p_buf(1) + r}, 0")
        a(f"v_mov_b32 v{v_0(3) + r}, 0")
    a(f"s_mov_b32 s{S_CNT}, 8")
    a("s_waitcnt vmcnt(16)")
    a(f"{MF} {vr(s_buf(0), 16)}, {vr(k_main(0), 4)}, {q_main(0)}, 0")
    a(f"{MF} {vr(s_buf(0), 16)}, {vr(k_tail(0), 4)}, {q_tail(0)}, {vr(s_buf(0), 16)}")
    a("s_waitcnt vmcnt(8)")
    a("s_nop 7\ns_nop 3")
    if diag:
        stamp(a, 1)
        a("s_waitcnt lgkmcnt(0)")
    a.raw(".p2align 3")
    a.label("L_k2_loop")
    for n in range(4):
        tile(a, n, n == 3, pad)
    a("s_cbranch_scc1 L_k2_loop")
    if diag:
        stamp(a, 2)
    a(f"{MF} {o_acc(3)}, {vr(v_0(3), 4)}, {vr(p_buf(1), 4)}, {o_acc(3)}")
    a(f"{MF} {o_acc(3)}, {vr(v_1(3), 4)}, {vr(p_buf(1) + 4, 4)}, {o_acc(3)}")
    a("s_nop 7\ns_nop 3")
    a(f"s_cmp_ge_u32 s{S_W}, 2\ns_cbranch_scc1 L_k2_wk1")
    exchange_and_store(a, 0)
    a("s_branch L_k2_done")
    a.label("L_k2_wk1")
    exchange_and_store(a, 1)
    a.label("L_k2_done")
    a("s_waitcnt vmcnt(0)")
    if diag:
        stamp(a, 3)
        stamp_store(a, 4)
        a("s_waitcnt vmcnt(0)")
    a.label("L_k2_end")
    a("s_endpgm")
```

```python
from common import *

MF = "v_mfma_f32_16x16x32_bf16"
LDS_BYTES = 640 * 160
S_X, S_WO, S_OM, S_OT, S_ST, S_Y, S_OUT = 8, 12, 16, 20, 44, 48, 52
S_W, S_TT, S_CT = 24, 25, 26
V_DMA = 8
V_AM0, V_AM1, V_AT0, V_AT1 = 13, 14, 15, 16
V_OM, V_OT = 17, 18
V_XO = 19
VB = 32
ACC = 112
FA = 132
VX = 172
VY = 184
VST = 204


def a_reads(a, step, fset):
    for blk in range(5):
        for sec in range(2):
            dst = vr(FA + 20 * fset + 4 * blk + 2 * sec, 2)
            if step < 16:
                reg = V_AM0 if step < 8 else V_AM1
                off = (step % 8) * 6400 + sec * 1280 + blk * 32
            else:
                u = step - 16
                reg = V_AT0 if u < 2 else V_AT1
                off = (u % 2) * 25600 + sec * 3200 + blk * 32
            a(f"ds_read_b64_tr_b16 {dst}, v{reg} offset:{off}")


def gen_k3(a, name="oproj_kernel"):
    a.begin_kernel(name)
    a(f"""
    s_cmp_ge_u32 s2, 256
    s_cbranch_scc1 L_k3_end
    s_load_dwordx2 s[4:5], s[0:1], {KA_X}
    s_load_dwordx2 s[6:7], s[0:1], {KA_WO}
    s_load_dwordx2 s[36:37], s[0:1], {KA_OUT}
    s_load_dwordx2 s[38:39], s[0:1], {KA_WS}
    v_lshrrev_b32 v1, 6, v0
    v_and_b32 v2, 63, v0
    v_readfirstlane_b32 s{S_W}, v1
    s_and_b32 s28, s2, 7
    s_lshr_b32 s29, s2, 3
    s_and_b32 s30, s29, 3
    s_lshl_b32 s28, s28, 2
    s_add_u32 s{S_TT}, s28, s30
    s_lshr_b32 s{S_CT}, s29, 2
    """)
    for q in range(5):
        a(f"""
        v_add_u32 v3, {64 * q}, v2
        v_mul_u32_u24 v4, 6554, v3
        v_lshrrev_b32 v4, 16, v4
        v_mul_u32_u24 v5, 10, v4
        v_sub_u32 v5, v3, v5
        v_mul_u32_u24 v4, 1280, v4
        v_lshl_add_u32 v{V_DMA + q}, v5, 4, v4
        """)
    a("s_waitcnt lgkmcnt(0)")
    a.srd(S_X, 4, 0, S * D * 2)
    a.srd(S_WO, 6, 0, D * D * 2)
    a.srd(S_OM, 38, WS_OM, OM_BYTES)
    a.srd(S_OT, 38, WS_OT, OT_BYTES)
    a.srd(S_ST, 38, WS_STAT, S * 8)
    a.srd(S_Y, 38, WS_Y, 2 * D * 4)
    a.srd(S_OUT, 36, 0, S * D * 2)
    a(f"""
    s_add_u32 s40, s38, {WS_IDX}
    s_addc_u32 s41, s39, 0
    s_load_dwordx2 s[42:43], s[40:41], 0
    v_and_b32 v3, 15, v2
    v_lshrrev_b32 v4, 4, v2
    s_and_b32 s28, s{S_W}, 1
    s_lshl_b32 s28, s28, 4
    v_add_u32 v5, s28, v3
    v_lshrrev_b32 v6, 1, v4
    v_and_b32 v7, 1, v4
    v_lshlrev_b32 v20, 10, v6
    v_lshl_add_u32 v20, v7, 9, v20
    v_lshl_add_u32 v{V_OM}, v5, 4, v20
    v_lshlrev_b32 v20, 9, v4
    v_lshl_add_u32 v{V_OT}, v5, 3, v20
    s_lshr_b32 s28, s{S_W}, 1
    s_lshl_b32 s29, s{S_TT}, 1
    s_add_u32 s28, s28, s29
    s_lshl_b32 s30, s28, 15
    s_lshl_b32 s31, s28, 13
    s_lshl_b32 s28, s28, 5
    v_add_u32 v21, s28, v5
    v_mul_u32_u24 v{V_XO}, 1280, v21
    s_mul_i32 s29, s{S_CT}, 160
    v_lshl_add_u32 v{V_XO}, v4, 3, v{V_XO}
    v_add_u32 v{V_XO}, s29, v{V_XO}
    s_mul_i32 s32, s{S_W}, {32 * 1280}
    s_add_u32 s32, s32, s29
    s_mul_i32 s33, s{S_W}, {32 * 160}
    """)
    order = []
    phases = [[0, 1, 2], [3, 4, 5, 16], [6, 7, 8, 17], [9, 10, 11, 18], [12, 13, 14, 15, 19]]
    for g in range(5):
        for q in range(5):
            a(f"s_add_u32 m0, s33, {g * 4 * 32 * 160 + q * 1024}")
            a(f"s_add_u32 s34, s32, {g * 4 * 32 * 1280}")
            a(f"buffer_load_dwordx4 v{V_DMA + q}, s[{S_WO}:{S_WO + 3}], s34 offen lds")
            order.append(("dma", g))
        for st in phases[g]:
            if st < 16:
                a(f"s_add_u32 s34, s30, {st * 2048}")
                a(f"buffer_load_dwordx4 {vr(VB + 4 * st, 4)}, v{V_OM}, s[{S_OM}:{S_OM + 3}], s34 offen")
                order.append(("o", g))
            else:
                a(f"s_add_u32 s34, s31, {(st - 16) * 2048}")
                for sec in range(2):
                    a(f"buffer_load_dwordx2 {vr(VB + 4 * st + 2 * sec, 2)}, v{V_OT}, s[{S_OT}:{S_OT + 3}], s34 offen offset:{256 * sec}")
                    order.append(("o", g))
    for blk in range(5):
        a(f"buffer_load_dwordx2 {vr(VX + 2 * blk, 2)}, v{V_XO}, s[{S_X}:{S_X + 3}], 0 offen offset:{32 * blk}")
        order.append(("x", 5))
    a(f"v_lshlrev_b32 v22, 3, v21")
    a(f"buffer_load_dwordx2 {vr(VST, 2)}, v22, s[{S_ST}:{S_ST + 3}], 0 offen")
    order.append(("x", 5))
    a(f"""
    s_waitcnt lgkmcnt(0)
    v_lshlrev_b32 v23, 4, v4
    s_mul_i32 s28, s{S_CT}, 320
    v_add_u32 v23, s28, v23
    v_add_u32 v24, 2560, v23
    v_mov_b32 v25, 0x10000000
    v_cmp_eq_u32 vcc, s42, v21
    v_cmp_eq_u32 s[28:29], s43, v21
    s_nop 0
    v_cndmask_b32 v25, v25, v23, vcc
    v_cndmask_b32 v25, v25, v24, s[28:29]
    """)
    for blk in range(5):
        a(f"buffer_load_dwordx4 {vr(VY + 4 * blk, 4)}, v25, s[{S_Y}:{S_Y + 3}], 0 offen offset:{64 * blk}")
        order.append(("x", 5))
    a(f"""
    v_bfe_u32 v3, v2, 2, 2
    v_and_b32 v5, 3, v2
    v_mul_u32_u24 v20, 20, v6
    v_lshl_add_u32 v20, v7, 2, v20
    v_add_u32 v20, v20, v3
    v_mul_u32_u24 v20, 160, v20
    v_lshl_add_u32 v{V_AM0}, v5, 3, v20
    v_add_u32 v{V_AM1}, {8 * 6400}, v{V_AM0}
    v_mul_u32_u24 v20, 40, v4
    v_add_u32 v20, 16, v20
    v_add_u32 v20, v20, v3
    v_mul_u32_u24 v20, 160, v20
    v_lshl_add_u32 v{V_AT0}, v5, 3, v20
    v_add_u32 v{V_AT1}, {2 * 25600}, v{V_AT0}
    """)
    for r in range(20):
        a(f"v_mov_b32 v{ACC + r}, 0")
    total = len(order)
    fset = 0
    for g in range(5):
        last = max(i for i, o in enumerate(order) if o[1] == g)
        a(f"s_waitcnt vmcnt({total - 1 - last})\ns_barrier")
        steps = phases[g]
        a_reads(a, steps[0], fset)
        for n, st in enumerate(steps):
            if n + 1 < len(steps):
                a_reads(a, steps[n + 1], fset ^ 1)
                a("s_waitcnt lgkmcnt(10)")
            else:
                a("s_waitcnt lgkmcnt(0)")
            for blk in range(5):
                acc = vr(ACC + 4 * blk, 4)
                a(f"{MF} {acc}, {vr(FA + 20 * fset + 4 * blk, 4)}, {vr(VB + 4 * st, 4)}, {acc}")
            fset ^= 1
    a("s_waitcnt vmcnt(0)")
    a(f"""
    v_add_f32 v26, 1.0, v{VST + 1}
    v_mul_f32 v27, v{VST}, v{VST + 1}
    s_nop 1
    """)
    for blk in range(5):
        acc, x, y = ACC + 4 * blk, VX + 2 * blk, VY + 4 * blk
        a(f"""
        v_lshlrev_b32 v28, 16, v{x}
        v_and_b32 v29, 0xffff0000, v{x}
        v_lshlrev_b32 v30, 16, v{x + 1}
        v_and_b32 v31, 0xffff0000, v{x + 1}
        """)
        for r in range(4):
            a(f"v_add_f32 v{acc + r}, v{acc + r}, v{y + r}")
            a(f"v_fma_f32 v{28 + r}, v{28 + r}, v26, -v27")
            a(f"v_add_f32 v{acc + r}, v{acc + r}, v{28 + r}")
        a(f"v_cvt_pk_bf16_f32 v{acc}, v{acc}, v{acc + 1}\nv_cvt_pk_bf16_f32 v{acc + 1}, v{acc + 2}, v{acc + 3}")
        a(f"buffer_store_dwordx2 {vr(acc, 2)}, v{V_XO}, s[{S_OUT}:{S_OUT + 3}], 0 offen offset:{32 * blk}")
    a("s_waitcnt vmcnt(0)")
    a.label("L_k3_end")
    a("s_endpgm")
```

```python
from common import *

MF = "v_mfma_f32_16x16x32_bf16"
ONES = 0x3f803f80
LOG2E = 1.4426950408889634


def top2(a, s_key, vk, s_i0, s_i1):
    a("v_lshlrev_b32 v3, 4, v2")
    for i in range(8):
        a(f"buffer_load_dwordx4 {vr(vk + 4 * i, 4)}, v3, s[{s_key}:{s_key + 3}], 0 offen offset:{(i % 4) * 1024}")
        if i == 3:
            a("v_add_u32 v3, 4096, v3")
    m1, m2, n1, n2, t = vk + 32, vk + 33, vk + 34, vk + 35, vk + 36
    a(f"v_mov_b32 v{m1}, 0\nv_mov_b32 v{m2}, 0")
    for i in range(8):
        a(f"s_waitcnt vmcnt({7 - i})")
        for r in range(4):
            a(f"v_med3_u32 v{m2}, v{m1}, v{m2}, v{vk + 4 * i + r}")
            a(f"v_max_u32 v{m1}, v{m1}, v{vk + 4 * i + r}")
    for ctl in ("row_shr:1 row_mask:0xf", "row_shr:2 row_mask:0xf", "row_shr:4 row_mask:0xf", "row_shr:8 row_mask:0xf",
                "row_bcast:15 row_mask:0xa", "row_bcast:31 row_mask:0xc"):
        a(f"v_mov_b32 v{n1}, 0\nv_mov_b32 v{n2}, 0\ns_nop 1")
        a(f"v_mov_b32_dpp v{n1}, v{m1} {ctl} bank_mask:0xf")
        a(f"v_mov_b32_dpp v{n2}, v{m2} {ctl} bank_mask:0xf")
        a(f"v_min_u32 v{t}, v{m1}, v{n1}")
        a(f"v_max_u32 v{m1}, v{m1}, v{n1}")
        a(f"v_max3_u32 v{m2}, v{t}, v{m2}, v{n2}")
    a(f"s_nop 0\nv_readlane_b32 s{s_i0}, v{m1}, 63\nv_readlane_b32 s{s_i1}, v{m2}, 63")
    a(f"s_and_b32 s{s_i0}, s{s_i0}, 0x7ff\ns_and_b32 s{s_i1}, s{s_i1}, 0x7ff")


GATE_LDS = 20480


def gate_body(a, s_g, lds_base, pfx):
    S_X, S_G, S_U, S_K, S_ST, S_H = 8, 12, 16, 20, 44, 48
    a.srd(S_X, 4, 0, S * D * 2)
    a.srd(S_G, 6, 0, D * F * 2)
    a.srd(S_U, 36, 0, D * F * 2)
    a.srd(S_K, 38, WS_KEY, S * 4)
    a.srd(S_ST, 38, WS_STAT, S * 8)
    a.srd(S_H, 38, WS_HID, 2 * F * 2 + 0)
    a(f"""
    v_mul_u32_u24 v4, 3072, v2
    s_lshl_b32 s28, s{s_g}, 4
    """)
    for q in range(10):
        for mtx, srd in ((0, S_G), (1, S_U)):
            a(f"s_mov_b32 m0, {lds_base + mtx * 10240 + q * 1024}")
            a(f"s_add_u32 s29, s28, {q * 64 * 3072}")
            a(f"buffer_load_dwordx4 v4, s[{srd}:{srd + 3}], s29 offen lds")
    top2(a, S_K, 64, 40, 41)
    a(f"""
    v_and_b32 v5, 15, v2
    v_lshrrev_b32 v6, 4, v2
    s_mul_i32 s30, s40, 1280
    s_mul_i32 s31, s41, 1280
    v_mov_b32 v7, 0x10000000
    v_mov_b32 v8, s30
    v_mov_b32 v9, s31
    v_cmp_eq_u32 vcc, 0, v5
    v_cmp_eq_u32 s[32:33], 1, v5
    v_lshlrev_b32 v10, 4, v6
    v_cndmask_b32 v7, v7, v8, vcc
    v_cndmask_b32 v7, v7, v9, s[32:33]
    v_add_u32 v7, v7, v10
    """)
    for st in range(20):
        a(f"buffer_load_dwordx4 {vr(112 + 4 * st, 4)}, v7, s[{S_X}:{S_X + 3}], 0 offen offset:{64 * st}")
    a(f"""
    s_lshl_b32 s30, s40, 3
    s_lshl_b32 s31, s41, 3
    v_mov_b32 v8, s30
    v_mov_b32 v9, s31
    buffer_load_dwordx2 v[12:13], v8, s[{S_ST}:{S_ST + 3}], 0 offen
    buffer_load_dwordx2 v[14:15], v9, s[{S_ST}:{S_ST + 3}], 0 offen
    v_bfe_u32 v8, v2, 2, 2
    v_and_b32 v9, 3, v2
    v_lshl_add_u32 v8, v6, 3, v8
    v_lshlrev_b32 v8, 4, v8
    v_and_b32 v10, 1, v9
    v_lshl_add_u32 v8, v10, 3, v8
    v_lshrrev_b32 v10, 1, v9
    v_mul_u32_u24 v10, 10240, v10
    v_add_u32 v8, v8, v10
    v_add_u32 v8, {lds_base}, v8
    """)
    for r in range(4):
        a(f"v_mov_b32 v{16 + r}, 0\nv_mov_b32 v{20 + r}, 0\nv_mov_b32 v{24 + r}, {ONES}")
    a("s_waitcnt vmcnt(0)")
    for st in range(20):
        f = 32 + 4 * (st & 3)
        a(f"ds_read_b64_tr_b16 {vr(f, 2)}, v8 offset:{st * 512}")
        a(f"ds_read_b64_tr_b16 {vr(f + 2, 2)}, v8 offset:{st * 512 + 64}")
        if st >= 1:
            p = st - 1
            fp = 32 + 4 * (p & 3)
            a("s_waitcnt lgkmcnt(2)")
            a(f"{MF} v[16:19], {vr(112 + 4 * p, 4)}, {vr(fp, 4)}, v[16:19]")
            a(f"{MF} v[20:23], v[24:27], {vr(fp, 4)}, v[20:23]")
    a("s_waitcnt lgkmcnt(0)")
    a(f"{MF} v[16:19], {vr(112 + 4 * 19, 4)}, {vr(32 + 4 * 3, 4)}, v[16:19]")
    a(f"{MF} v[20:23], v[24:27], {vr(32 + 4 * 3, 4)}, v[20:23]")
    a("s_nop 7")
    a(f"""
    v_fma_f32 v16, -v12, v20, v16
    v_fma_f32 v17, -v14, v20, v17
    v_mul_f32 v16, v16, v13
    v_mul_f32 v17, v17, v15
    s_mov_b32 s30, {hex(f32bits(-LOG2E))}
    v_mul_f32 v28, s30, v16
    v_mul_f32 v29, s30, v17
    v_exp_f32 v28, v28
    v_exp_f32 v29, v29
    v_mov_b32_dpp v30, v16 row_ror:8 row_mask:0xf bank_mask:0xf
    v_mov_b32_dpp v31, v17 row_ror:8 row_mask:0xf bank_mask:0xf
    v_add_f32 v28, 1.0, v28
    v_add_f32 v29, 1.0, v29
    v_rcp_f32 v28, v28
    v_rcp_f32 v29, v29
    s_nop 0
    v_mul_f32 v28, v28, v16
    v_mul_f32 v29, v29, v17
    v_mul_f32 v28, v28, v30
    v_mul_f32 v29, v29, v31
    v_cvt_pk_bf16_f32 v28, v28, v29
    v_lshlrev_b32 v8, 1, v2
    s_lshl_b32 s30, s{s_g}, 4
    v_add_u32 v8, s30, v8
    v_lshrrev_b32 v29, 16, v28
    v_cmp_gt_u32 vcc, 8, v2
    s_and_saveexec_b64 s[32:33], vcc
    buffer_store_short v28, v8, s[{S_H}:{S_H + 3}], 0 offen sc1
    buffer_store_short v29, v8, s[{S_H}:{S_H + 3}], 0 offen offset:3072 sc1
    s_mov_b64 exec, s[32:33]
    """)


def gen_kg(a, name="gate_kernel"):
    a.begin_kernel(name)
    a(f"""
    s_cmp_ge_u32 s2, 192
    s_cbranch_scc1 L_kg_end
    s_load_dwordx2 s[4:5], s[0:1], {KA_X}
    s_load_dwordx2 s[6:7], s[0:1], {KA_WG}
    s_load_dwordx2 s[36:37], s[0:1], {KA_WU}
    s_load_dwordx2 s[38:39], s[0:1], {KA_WS}
    v_mov_b32 v2, v0
    s_waitcnt lgkmcnt(0)
    """)
    gate_body(a, 2, 0, "kg")
    a(f"""
    s_cmp_lg_u32 s2, 0
    s_cbranch_scc1 L_kg_done
    """)
    a.srd(8, 38, WS_IDX, 8)
    a(f"""
    v_mov_b32 v8, s40
    v_mov_b32 v9, s41
    v_mov_b32 v10, 0
    buffer_store_dwordx2 v[8:9], v10, s[8:11], 0 offen
    """)
    a.label("L_kg_done")
    a("s_waitcnt vmcnt(0)")
    a.label("L_kg_end")
    a("s_endpgm")


DOWN_LDS = 49152 + 6144


def down_body(a, s_c, lds_base):
    S_WD, S_H, S_R, S_Y = 8, 12, 16, 20
    a.srd(S_WD, 6, 0, F * D * 2)
    a.srd(S_H, 38, WS_HID, 2 * F * 2)
    a.srd(S_R, 38, WS_R, S * 4)
    a.srd(S_Y, 38, WS_Y, 2 * D * 4)
    a(f"""
    v_lshrrev_b32 v4, 1, v2
    v_mul_u32_u24 v4, 1280, v4
    v_and_b32 v5, 1, v2
    v_lshl_add_u32 v4, v5, 4, v4
    s_lshl_b32 s28, s{s_c}, 5
    """)
    for q in range(48):
        a(f"s_mov_b32 m0, {lds_base + q * 1024}")
        a(f"s_add_u32 s29, s28, {q * 32 * 1280}")
        a(f"buffer_load_dwordx4 v4, s[{S_WD}:{S_WD + 3}], s29 offen lds")
    a("v_lshlrev_b32 v4, 4, v2")
    for q in range(6):
        a(f"s_mov_b32 m0, {lds_base + 49152 + q * 1024}")
        a(f"s_mov_b32 s29, {q * 1024}")
        a(f"buffer_load_dwordx4 v4, s[{S_H}:{S_H + 3}], s29 offen sc1 lds")
    a(f"""
    s_lshl_b32 s30, s40, 2
    s_lshl_b32 s31, s41, 2
    v_mov_b32 v8, s30
    v_mov_b32 v9, s31
    buffer_load_dword v12, v8, s[{S_R}:{S_R + 3}], 0 offen
    buffer_load_dword v13, v9, s[{S_R}:{S_R + 3}], 0 offen
    v_lshrrev_b32 v6, 4, v2
    v_bfe_u32 v8, v2, 2, 2
    v_and_b32 v9, 3, v2
    v_lshl_add_u32 v8, v6, 3, v8
    v_lshlrev_b32 v8, 5, v8
    v_lshl_add_u32 v8, v9, 3, v8
    v_add_u32 v8, {lds_base}, v8
    v_and_b32 v9, 1, v2
    v_mul_u32_u24 v9, 3072, v9
    v_lshl_add_u32 v9, v6, 4, v9
    v_add_u32 v9, {lds_base + 49152}, v9
    """)
    for r in range(4):
        a(f"v_mov_b32 v{16 + r}, 0")
    a("s_waitcnt vmcnt(0)")
    for st in range(48):
        f = 32 + 8 * (st & 3)
        a(f"ds_read_b64_tr_b16 {vr(f, 2)}, v8 offset:{st * 1024}")
        a(f"ds_read_b64_tr_b16 {vr(f + 2, 2)}, v8 offset:{st * 1024 + 128}")
        a(f"ds_read_b128 {vr(f + 4, 4)}, v9 offset:{st * 64}")
        if st >= 1:
            fp = 32 + 8 * ((st - 1) & 3)
            a("s_waitcnt lgkmcnt(3)")
            a(f"{MF} v[16:19], {vr(fp + 4, 4)}, {vr(fp, 4)}, v[16:19]")
    fp = 32 + 8 * (47 & 3)
    a("s_waitcnt lgkmcnt(0)")
    a(f"{MF} v[16:19], {vr(fp + 4, 4)}, {vr(fp, 4)}, v[16:19]")
    a(f"""
    s_mov_b32 s30, {hex(f32bits(-LOG2E))}
    v_mul_f32 v12, s30, v12
    v_mul_f32 v13, s30, v13
    v_exp_f32 v12, v12
    v_exp_f32 v13, v13
    s_nop 0
    v_add_f32 v12, 1.0, v12
    v_add_f32 v13, 1.0, v13
    v_rcp_f32 v12, v12
    v_rcp_f32 v13, v13
    s_nop 0
    v_mul_f32 v16, v16, v12
    v_mul_f32 v17, v17, v13
    v_lshlrev_b32 v8, 2, v2
    s_lshl_b32 s30, s{s_c}, 6
    v_add_u32 v8, s30, v8
    v_cmp_gt_u32 vcc, 16, v2
    s_and_saveexec_b64 s[32:33], vcc
    buffer_store_dword v16, v8, s[{S_Y}:{S_Y + 3}], 0 offen sc1
    buffer_store_dword v17, v8, s[{S_Y}:{S_Y + 3}], 0 offen offset:2560 sc1
    s_mov_b64 exec, s[32:33]
    """)


def gen_kd(a, name="down_kernel"):
    a.begin_kernel(name)
    a(f"""
    s_cmp_ge_u32 s2, 40
    s_cbranch_scc1 L_kd_end
    s_load_dwordx2 s[6:7], s[0:1], {KA_WD}
    s_load_dwordx2 s[38:39], s[0:1], {KA_WS}
    v_mov_b32 v2, v0
    s_waitcnt lgkmcnt(0)
    s_add_u32 s42, s38, {WS_IDX}
    s_addc_u32 s43, s39, 0
    s_load_dwordx2 s[40:41], s[42:43], 0
    s_waitcnt lgkmcnt(0)
    """)
    down_body(a, 2, 0)
    a("s_waitcnt vmcnt(0)")
    a.label("L_kd_end")
    a("s_endpgm")
```

```python
import re
import sys

TRANS = ("v_exp_f32", "v_log_f32", "v_rcp_f32", "v_rsq_f32", "v_sqrt_f32", "v_sin_f32", "v_cos_f32",
         "v_rcp_iflag_f32", "v_exp_f16", "v_rcp_f16")
MFMA_PASSES = {
    "v_mfma_f32_32x32x16_bf16": 8, "v_mfma_f32_16x16x32_bf16": 4,
    "v_mfma_f32_32x32x16_f16": 8, "v_mfma_f32_16x16x32_f16": 4,
}


def regs_of(tok):
    tok = tok.strip()
    neg = tok.lstrip("-")
    if neg.startswith("abs(") and neg.endswith(")"):
        neg = neg[4:-1]
    if neg.startswith("|") and neg.endswith("|"):
        neg = neg[1:-1]
    m = re.fullmatch(r"([vsa])(\d+)", neg)
    if m:
        return {m.group(1) + m.group(2)}
    m = re.fullmatch(r"([vsa])\[(\d+):(\d+)\]", neg)
    if m:
        return {m.group(1) + str(i) for i in range(int(m.group(2)), int(m.group(3)) + 1)}
    if neg == "vcc":
        return {"vcc_lo", "vcc_hi"}
    if neg in ("vcc_lo", "vcc_hi", "m0", "exec_lo", "exec_hi", "scc"):
        return {neg}
    if neg == "exec":
        return {"exec_lo", "exec_hi"}
    return set()


class Ins:
    __slots__ = ("idx", "text", "op", "ops", "mods", "dst", "src", "kind", "passes", "line",
                 "cnt", "srcC", "srcAB", "store_data", "dpp", "sdwa", "lds_dma", "target")

    def __repr__(self):
        return f"L{self.line}: {self.text}"


def split_ops(s):
    out, depth, cur = [], 0, ""
    for ch in s:
        if ch in "[(":
            depth += 1
        if ch in "])":
            depth -= 1
        if ch == "," and depth == 0:
            out.append(cur.strip())
            cur = ""
        else:
            cur += ch
    if cur.strip():
        out.append(cur.strip())
    return out


def parse_ins(text, line):
    i = Ins()
    i.text, i.line = text, line
    parts = text.split(None, 1)
    op = parts[0]
    for suf in ("_e32", "_e64"):
        if op.endswith(suf):
            op = op[:-4]
    i.op = op
    rest = parts[1] if len(parts) > 1 else ""
    ops = split_ops(rest)
    mods = ""
    if ops:
        last = ops[-1].split()
        if len(last) > 1:
            ops[-1] = last[0]
            mods = " ".join(last[1:])
            if last[0] in ("offen", "off") and False:
                pass
    i.ops, i.mods = ops, mods
    i.dst, i.src = set(), set()
    i.kind, i.passes, i.cnt = "other", 0, None
    i.srcC, i.srcAB, i.store_data = set(), set(), set()
    i.dpp = op.endswith("_dpp") or "row_" in mods or "quad_perm" in mods or "wave_" in mods
    i.sdwa = op.endswith("_sdwa")
    i.lds_dma = False
    i.target = None
    R = [regs_of(o) for o in ops]

    if op in MFMA_PASSES:
        i.kind, i.passes = "mfma", MFMA_PASSES[op]
        i.dst = R[0]
        i.srcAB = R[1] | R[2]
        i.srcC = R[3]
        i.src = i.srcAB | i.srcC
    elif op.startswith("v_cmp"):
        i.kind = "valu"
        i.dst = R[0]
        i.src = set().union(*R[1:])
    elif op in ("v_readfirstlane_b32", "v_readlane_b32"):
        i.kind = "valu"
        i.dst = R[0]
        i.src = set().union(*R[1:])
    elif op in ("v_permlane32_swap_b32", "v_permlane16_swap_b32", "v_swap_b32"):
        i.kind = "valu"
        i.dst = R[0] | R[1]
        i.src = R[0] | R[1]
    elif op.startswith("v_"):
        i.kind = "trans" if op in TRANS else "valu"
        base = op.replace("_dpp", "").replace("_sdwa", "")
        if base in ("v_add_co_u32", "v_sub_co_u32", "v_subrev_co_u32"):
            i.dst = R[0] | R[1]
            i.src = set().union(*R[2:])
        elif base in ("v_addc_co_u32", "v_subb_co_u32"):
            i.dst = R[0] | R[1]
            i.src = set().union(*R[2:])
        else:
            i.dst = R[0]
            i.src = set().union(*R[1:]) if len(R) > 1 else set()
            if base in ("v_fmac_f32", "v_pk_fmac_f16", "v_dot2c_f32_bf16", "v_writelane_b32") or i.dpp or \
                    (i.sdwa and "UNUSED_PRESERVE" in mods):
                i.src |= R[0]
            if base == "v_cndmask_b32" and len(ops) == 3:
                i.src |= {"vcc_lo", "vcc_hi"}
    elif op.startswith("buffer_load") or op.startswith("global_load"):
        i.kind, i.cnt = "vmem", "vm"
        if op.startswith("buffer_load") and re.search(r"\blds\b", mods + " " + " ".join(ops)):
            i.lds_dma = True
            i.src = set().union(*R) | {"m0"}
        elif op.startswith("global_load_lds"):
            i.lds_dma = True
            i.src = set().union(*R) | {"m0"}
        else:
            i.dst = R[0]
            i.src = set().union(*R[1:])
    elif op.startswith("buffer_store") or op.startswith("global_store"):
        i.kind, i.cnt = "vmem", "vm"
        i.src = set().union(*R)
        i.store_data = R[0] if op.startswith("buffer") else R[1]
    elif op.startswith("buffer_atomic") or op.startswith("global_atomic"):
        i.kind, i.cnt = "vmem", "vm"
        i.src = set().union(*R)
        if "sc0" in mods:
            i.dst = R[0]
    elif op in ("buffer_inv", "buffer_wbl2"):
        i.kind, i.cnt = "vmem", "vm"
    elif op.startswith("ds_read") or op.startswith("ds_bpermute") or op.startswith("ds_swizzle") or op.startswith("ds_permute"):
        i.kind, i.cnt = "ds", "lgkm"
        i.dst = R[0]
        i.src = set().union(*R[1:])
    elif op.startswith("ds_write") or op.startswith("ds_add") or op.startswith("ds_max") or op.startswith("ds_or"):
        i.kind, i.cnt = "ds", "lgkm"
        i.src = set().union(*R)
        if "_rtn" in op:
            i.dst = R[0]
            i.src = set().union(*R[1:])
    elif op.startswith("s_load") or op.startswith("s_buffer_load") or op in ("s_memtime", "s_memrealtime"):
        i.kind, i.cnt = "smem", "lgkm"
        i.dst = R[0]
        i.src = set().union(*R[1:]) if len(R) > 1 else set()
    elif op in ("s_branch",) or op.startswith("s_cbranch"):
        i.kind = "branch"
        i.target = ops[0]
        if "vcc" in op:
            i.src = {"vcc_lo", "vcc_hi"}
        if "exec" in op:
            i.src = {"exec_lo", "exec_hi"}
    elif op in ("s_waitcnt", "s_nop", "s_barrier", "s_endpgm", "s_setprio", "s_sleep"):
        i.kind = op
    elif op.startswith("s_cmp") or op.startswith("s_bitcmp"):
        i.kind = "salu"
        i.src = set().union(*R)
    elif op.startswith("s_"):
        i.kind = "salu"
        i.dst = set(R[0])
        i.src = set().union(*R[1:]) if len(R) > 1 else set()
        if "saveexec" in op:
            i.dst |= {"exec_lo", "exec_hi"}
            i.src |= {"exec_lo", "exec_hi"}
        if op in ("s_addk_i32", "s_mulk_i32"):
            i.src |= R[0]
    else:
        raise ValueError(f"lint: unknown instruction at line {line}: {text}")
    return i


def parse(text):
    ins, labels = [], {}
    for n, raw in enumerate(text.splitlines(), 1):
        s = raw.split(";")[0].split("//")[0].strip()
        if not s or s.startswith("."):
            continue
        m = re.match(r"^([A-Za-z_][\w.$]*):\s*(.*)$", s)
        if m:
            labels[m.group(1)] = len(ins)
            s = m.group(2).strip()
            if not s:
                continue
        ins.append(parse_ins(s, n))
    for k, i in enumerate(ins):
        i.idx = k
    return ins, labels


def waitcnt_vals(i):
    t = i.text
    vm = re.search(r"vmcnt\((\d+)\)", t)
    lg = re.search(r"lgkmcnt\((\d+)\)", t)
    return (int(vm.group(1)) if vm else None, int(lg.group(1)) if lg else None)


def isv(r):
    return r[0] in "va" and r not in ("vcc_lo", "vcc_hi")


def vset(s):
    return {r for r in s if isv(r)}


def sset(s):
    return {r for r in s if not isv(r)}


def need_states(p, c):
    p_valu = p.kind in ("valu", "trans")
    c_valu = c.kind in ("valu", "trans")
    pv = vset(p.dst)
    n, why = 0, ""

    def up(k, w):
        nonlocal n, why
        if k > n:
            n, why = k, w
    if p_valu and c.kind == "mfma" and pv & c.src:
        up(2, "VALU->MFMA operand")
    if p.kind == "mfma":
        P = p.passes
        if c.kind == "mfma":
            if p.dst & c.srcAB:
                up({4: 8, 8: 12}[P], "MFMA D->MFMA A/B")
            if p.dst & c.srcC:
                if not (p.dst == c.srcC and p.passes == c.passes):
                    up({4: 6, 8: 10}[P], "MFMA D->MFMA C partial")
            elif p.dst & c.dst and not (p.dst & c.srcC):
                if p.dst != c.dst or p.passes != c.passes:
                    up({4: 6, 8: 10}[P], "MFMA D->MFMA D WAW partial")
        elif c_valu and (p.dst & (c.src | c.dst)):
            up({4: 8, 8: 12}[P], "MFMA D->VALU")
        elif c.kind in ("vmem", "ds") and (p.dst & (c.src | c.dst)):
            up({4: 8, 8: 12}[P], "MFMA D->mem")
        if c_valu and (vset(p.srcC) & vset(c.dst)):
            up({4: 3, 8: 7}[P], "MFMA srcC WAR")
    if p.kind == "trans" and c.kind != "trans" and pv & vset(c.src):
        up(1, "trans->use")
    if p_valu and c.op in ("v_readlane_b32", "v_readfirstlane_b32") and pv & vset(c.src):
        up(1, "VALU->readlane")
    if p_valu and c.op.startswith("v_permlane") and pv & vset(c.src):
        up(2, "VALU->permlane")
    if p_valu and c.dpp and pv & vset(c.src):
        up(2, "VALU->DPP")
    ps = sset(p.dst)
    if p_valu and ps:
        if c_valu and ps & sset(c.src):
            up(4 if c.op in ("v_readlane_b32", "v_writelane_b32") else 2, "VALU sgpr->VALU")
        if c.kind == "vmem" and ps & sset(c.src):
            up(5, "VALU sgpr->VMEM")
    if p.kind == "vmem" and p.store_data and len(p.store_data) >= 3:
        if c_valu and p.store_data & vset(c.dst):
            up(2, "store data WAR (VALU)")
        elif (c.kind in ("vmem", "ds", "mfma")) and p.store_data & vset(c.dst):
            up(1, "store data WAR")
    if p.kind == "salu" and "m0" in p.dst and c.lds_dma:
        up(1, "m0->LDS DMA")
    if p.op.startswith("v_dot2") and pv & vset(c.src | c.dst):
        same_c = c.op == p.op and len(c.ops) == 4 and regs_of(c.ops[3]) == pv and not (pv & (regs_of(c.ops[1]) | regs_of(c.ops[2])))
        if not same_c:
            up(3, "DLop result")
    if p.sdwa and c_valu and pv & vset(c.src | c.dst):
        up(1, "SDWA result")
    return n, why


WINDOW = 20


def check_kernel(ins, labels, entry, name, verbose=False):
    errors = set()
    seen = {}
    stack = [(entry, (), (), ())]
    steps = 0
    while stack:
        pc, win, vm, lg = stack.pop()
        while True:
            steps += 1
            if steps > 4_000_000:
                errors.add(f"{name}: lint gave up (too many steps)")
                return errors
            if pc >= len(ins):
                errors.add(f"{name}: ran off the end")
                break
            i = ins[pc]
            key = (pc, win, vm, lg)
            h = hash(key)
            s = seen.setdefault(pc, set())
            if h in s:
                break
            if len(s) > 24:
                break
            s.add(h)
            for (pidx, dist) in win:
                p = ins[pidx]
                n, why = need_states(p, i)
                if n > dist:
                    errors.add(f"{name}: HAZARD {why}: need {n} have {dist}\n    P {p}\n    C {i}")
            touched = i.src | i.dst
            for (pidx, regs) in vm:
                if regs & touched:
                    errors.add(f"{name}: VM-PENDING {sorted(regs & touched)[:4]}\n    P {ins[pidx]}\n    C {i}")
            for (pidx, regs) in lg:
                if regs & touched and not (i.kind == "ds" and ins[pidx].kind == "ds" and not (regs & i.src)):
                    errors.add(f"{name}: LGKM-PENDING {sorted(regs & touched)[:4]}\n    P {ins[pidx]}\n    C {i}")
            if i.kind == "s_waitcnt":
                a, b = waitcnt_vals(i)
                if a is not None and len(vm) > a:
                    vm = vm[len(vm) - a:] if a else ()
                if b is not None:
                    has_smem = any(ins[x].kind == "smem" for x, _ in lg)
                    if b == 0:
                        lg = ()
                    elif not has_smem and len(lg) > b:
                        lg = lg[len(lg) - b:]
            if i.cnt == "vm":
                vm = vm + ((i.idx, frozenset(i.dst)),)
                if len(vm) > 63:
                    errors.add(f"{name}: more than 63 outstanding vm ops at {i}")
                    vm = vm[-63:]
            if i.cnt == "lgkm":
                lg = lg + ((i.idx, frozenset(i.dst)),)
                if len(lg) > 40:
                    lg = lg[-40:]
            step = 1
            if i.kind == "s_nop":
                step = int(i.ops[0], 0) + 1
            win = tuple((a, d + step) for (a, d) in win if d + step <= WINDOW)
            if i.kind in ("valu", "trans", "mfma", "salu", "vmem"):
                win = win + ((i.idx, 0),)
            if i.kind == "s_endpgm":
                break
            if i.kind == "branch":
                tgt = labels[i.target]
                if i.op == "s_branch":
                    pc = tgt
                    continue
                stack.append((tgt, win, vm, lg))
            pc += 1
    return errors


def lint(text, kernels):
    ins, labels = parse(text)
    errs = set()
    for k in kernels:
        errs |= check_kernel(ins, labels, labels[k], k)
    return sorted(errs)


if __name__ == "__main__":
    t = open(sys.argv[1]).read()
    ks = re.findall(r"^\.amdhsa_kernel\s+(\S+)", t, re.M)
    e = lint(t, ks)
    for x in e:
        print(x)
    print(f"{len(e)} problems")
```

```python
import sys
from common import *
import k0, k1, k2, k3, kmoe, lint

def build(kernels, launches, quiet=False):
    a = Asm()
    a.raw(HEADER.rstrip("\n"))
    for (name, grid, block, lds) in launches:
        a.raw(f"; @launch kernel={name} grid=({grid},1,1) block=({block},1,1) lds={lds}")
    a.raw('.amdgcn_target "amdgcn-amd-amdhsa--gfx950"')
    for (name, fn, vgpr) in kernels:
        fn(a, name)
    for (name, fn, vgpr) in kernels:
        a.descriptor(name, vgpr)
    text = a.text()
    errs = lint.lint(text, [k[0] for k in kernels])
    for e in errs:
        print(e)
    print(f"lint: {len(errs)} problems", file=sys.stderr)
    return text

K0 = ("stats_kernel", k0.gen_k0, 128)
L0 = ("stats_kernel", 256, 256, 4096)
K1 = ("qkv_kernel", k1.gen_k1, 160)
L1 = ("qkv_kernel", 256, 256, k1.LDS_BYTES)
K2 = ("attn_kernel", k2.gen_k2, 256)
L2 = ("attn_kernel", 256, 256, 24576)

K3 = ("oproj_kernel", k3.gen_k3, 208)
L3 = ("oproj_kernel", 256, 256, k3.LDS_BYTES)
KG = ("gate_kernel", kmoe.gen_kg, 200)
LG = ("gate_kernel", 192, 64, kmoe.GATE_LDS)
KD = ("down_kernel", kmoe.gen_kd, 128)
LD = ("down_kernel", 40, 64, kmoe.DOWN_LDS)

if __name__ == "__main__":
    open("v1.s", "w").write(build([K0, K1, KG, KD, K2, K3], [L0, L1, LG, LD, L2, L3]))
    open("k01_test.s", "w").write(build([K0, K1], [L0, L1]))
    open("k2_test.s", "w").write(build([K2], [L2]))
    open("k2_diag.s", "w").write(build([("attn_kernel", lambda a, n: k2.gen_k2(a, n, diag=True), 256)], [L2]))
```

```python
import sys
from common import *
import k0, k1, k2, k3, kmoe, lint

def build(kernels, launches, quiet=False):
    a = Asm()
    a.raw(HEADER.rstrip("\n"))
    for (name, grid, block, lds) in launches:
        a.raw(f"; @launch kernel={name} grid=({grid},1,1) block=({block},1,1) lds={lds}")
    a.raw('.amdgcn_target "amdgcn-amd-amdhsa--gfx950"')
    for (name, fn, vgpr) in kernels:
        fn(a, name)
    for (name, fn, vgpr) in kernels:
        a.descriptor(name, vgpr)
    text = a.text()
    errs = lint.lint(text, [k[0] for k in kernels])
    for e in errs:
        print(e)
    print(f"lint: {len(errs)} problems", file=sys.stderr)
    return text

K0 = ("stats_kernel", k0.gen_k0, 128)
L0 = ("stats_kernel", 256, 256, 4096)
K1 = ("qkv_kernel", k1.gen_k1, 160)
L1 = ("qkv_kernel", 256, 256, k1.LDS_BYTES)
K2 = ("attn_kernel", k2.gen_k2, 256)
L2 = ("attn_kernel", 256, 256, 24576)

K3 = ("oproj_kernel", k3.gen_k3, 208)
L3 = ("oproj_kernel", 256, 256, k3.LDS_BYTES)
KG = ("gate_kernel", kmoe.gen_kg, 200)
LG = ("gate_kernel", 192, 64, kmoe.GATE_LDS)
KD = ("down_kernel", kmoe.gen_kd, 128)
LD = ("down_kernel", 40, 64, kmoe.DOWN_LDS)

if __name__ == "__main__":
    open("v1.s", "w").write(build([K0, K1, KG, KD, K2, K3], [L0, L1, LG, LD, L2, L3]))
    open("k01_test.s", "w").write(build([K0, K1], [L0, L1]))
    open("k2_test.s", "w").write(build([K2], [L2]))
    open("k2_diag.s", "w").write(build([("attn_kernel", lambda a, n: k2.gen_k2(a, n, diag=True), 256)], [L2]))

def gen_empty(a, name):
    a.begin_kernel(name)
    a("s_endpgm")
KE = ("empty_kernel", gen_empty, 8)
LE = ("empty_kernel", 256, 256, 0)
def variants():
    ks = [K0, K1, KG, KD, K2, K3, KE]
    base = [L0, L1, LG, LD, L2, L3]
    open("var_e1.s", "w").write(build(ks, base + [LE]))
    open("var_e3.s", "w").write(build(ks, base + [LE, LE, LE]))
    open("var_2a.s", "w").write(build(ks[:-1], [L0, L1, LG, LD, L2, L2, L3]))
    open("var_2q.s", "w").write(build(ks[:-1], [L0, L1, L1, LG, LD, L2, L3]))
    open("var_2o.s", "w").write(build(ks[:-1], [L0, L1, LG, LD, L2, L3, L3]))
if __name__ == "__main__" and len(sys.argv) > 1 and sys.argv[1] == "variants":
    variants()
```

```python
NAME = "parallel_sum__mha_block__moe_arch_mod__prompt"

S, D, H, DH, F = 2048, 640, 32, 20, 1536

KA_X, KA_WQKV, KA_WO, KA_BX, KA_WR, KA_WG, KA_WU, KA_WD, KA_OUT, KA_DBG, KA_WS = [8 * i for i in range(11)]

PAIR_BYTES = S * 16
QP_BYTES = 80 * PAIR_BYTES
VJ_BYTES = 641 * 32
VT_BYTES = 2 * VJ_BYTES
VI_BYTES = 64 * VT_BYTES
WS_QP = 0
WS_KP = WS_QP + QP_BYTES
WS_VI = WS_KP + QP_BYTES
WS_OM = (WS_VI + VI_BYTES + 255) // 256 * 256
OM_BYTES = 64 * H * 1024
WS_OT = WS_OM + OM_BYTES
OT_BYTES = 64 * H * 256
WS_STAT = WS_OT + OT_BYTES
WS_R = WS_STAT + S * 8
WS_KEY = WS_R + S * 4
WS_CSP = WS_KEY + S * 4
CSP_BYTES = 16 * 16 * 1024
WS_CAND = WS_CSP + CSP_BYTES
WS_HID = WS_CAND + 256
WS_Y = WS_HID + 8192
WS_IDX = WS_Y + 8192
WS_STATG = WS_IDX + 256
FLAG_AREA = 256 * 128
WS_F0 = (WS_STATG + S * 16 + 127) // 128 * 128
WS_F1 = WS_F0 + FLAG_AREA
WS_F2 = WS_F1 + FLAG_AREA
WS_FG = WS_F2 + FLAG_AREA
WS_FD = WS_FG + FLAG_AREA
WS_FY = WS_FD + FLAG_AREA
WS_PG = WS_FY + FLAG_AREA
WS_PY = WS_PG + 240 * 1024
WS_END = WS_PY + 240 * 512

QSCALE = (DH ** -0.5) * 1.4426950408889634


def f32bits(x):
    import struct
    return struct.unpack("<I", struct.pack("<f", x))[0]


def vr(a, n=1):
    return f"v{a}" if n == 1 else f"v[{a}:{a + n - 1}]"


def sr(a, n=1):
    return f"s{a}" if n == 1 else f"s[{a}:{a + n - 1}]"


class Asm:
    def __init__(self):
        self.lines = []

    def __call__(self, text):
        for ln in text.strip("\n").split("\n"):
            ln = ln.strip()
            if not ln:
                continue
            if ln.endswith(":"):
                self.lines.append(ln)
            else:
                self.lines.append("    " + ln)

    def label(self, name):
        self.lines.append(name + ":")

    def raw(self, text):
        self.lines.append(text)

    def text(self):
        return "\n".join(self.lines) + "\n"

    def begin_kernel(self, name):
        self.raw(".text")
        self.raw(f".globl {name}")
        self.raw(".p2align 8")
        self.raw(f".type {name},@function")
        self.raw(f"{name}:")

    def descriptor(self, name, vgpr, sgpr=102, accum=None):
        accum = accum if accum is not None else (vgpr + 3) // 4 * 4
        self.raw('.section .rodata,"a"')
        self.raw(".p2align 6")
        self.raw(f".amdhsa_kernel {name}")
        self.raw(f"  .amdhsa_next_free_vgpr {vgpr}")
        self.raw(f"  .amdhsa_next_free_sgpr {sgpr}")
        self.raw(f"  .amdhsa_accum_offset {accum}")
        self.raw("  .amdhsa_group_segment_fixed_size 0")
        self.raw("  .amdhsa_kernarg_size 88")
        self.raw("  .amdhsa_user_sgpr_count 2")
        self.raw("  .amdhsa_user_sgpr_kernarg_segment_ptr 1")
        self.raw("  .amdhsa_system_sgpr_workgroup_id_x 1")
        self.raw("  .amdhsa_float_denorm_mode_32 3")
        self.raw(".end_amdhsa_kernel")

    def srd(self, s, ptr, off, size):
        if isinstance(off, int) and off == 0:
            self(f"s_mov_b32 s{s}, s{ptr}\ns_mov_b32 s{s + 1}, s{ptr + 1}")
        else:
            o = off if isinstance(off, str) else hex(off)
            self(f"s_add_u32 s{s}, s{ptr}, {o}\ns_addc_u32 s{s + 1}, s{ptr + 1}, 0")
        self(f"s_mov_b32 s{s + 2}, {hex(size)}\ns_mov_b32 s{s + 3}, 0x00020000")


HEADER = """; Kernarg layout for this problem (88 bytes, ptrs only, base s[0:1]):
"""


DIAG = {"on": False}
STAMP_WS = 48 << 20
STAMP_S0 = 78


def stamp(a, i):
    if DIAG["on"]:
        a(f"s_memtime s[{STAMP_S0 + 2 * i}:{STAMP_S0 + 2 * i + 1}]")


def stamp_flush(a, n, s_ws, s_wave, kidx):
    if not DIAG["on"]:
        return
    a("s_waitcnt lgkmcnt(0) vmcnt(0)")
    a(f"s_add_u32 s72, s{s_ws}, {STAMP_WS + kidx * 262144}\ns_addc_u32 s73, s{s_ws + 1}, 0\ns_mov_b32 s74, 262144\ns_mov_b32 s75, 0x00020000")
    a(f"s_lshl_b32 s76, s2, 3\ns_add_u32 s76, s76, s{s_wave}\ns_lshl_b32 s76, s76, 7\nv_mov_b32 v1, s76")
    for i in range(n):
        a(f"v_mov_b32 v0, s{STAMP_S0 + 2 * i}\nbuffer_store_dword v0, v1, s[72:75], 0 offen offset:{4 * i}\ns_nop 0")
    a("s_waitcnt vmcnt(0)")
```

```python
from common import *
import k2

MF32 = "v_mfma_f32_32x32x16_bf16"
MF16 = "v_mfma_f32_16x16x32_bf16"
ONES = 0x3f803f80
LOG2E = 1.4426950408889634
OOB = 0x10000000

S_W = 3
P_X, P_WQKV, P_WO, P_WR, P_WG, P_WU, P_WD, P_OUT, P_DBG, P_WS = 4, 6, 8, 12, 14, 16, 18, 20, 22, 24
S_NONCE, S_TT, S_CT = 26, 27, 28
RA, RB, RC, RD, RE, RF = 32, 36, 40, 44, 48, 52
S_SPIN, SPIN_MAX = 67, 200000
VL = 255

SLOT = 32768
LDS_CS = 161792
LDS_RS = LDS_CS + 512
LDS_NONCE = LDS_RS + 1024
LDS_DONE = LDS_NONCE + 4
LDS_READY = LDS_NONCE + 8
WO_BYTES = 640 * 160
LDS_AUX = WO_BYTES
LDS_BYTES = 163840

CH_A = [0, 2, 1, 3, 4, 6, 5, 7]
OPT = {"moe": True, "kv_sc1": True, "helpers": True, "poll_sleep": 2, "wo_inflight": 5}


def srd4(r):
    return f"s[{r}:{r + 3}]"


def poll(a, label, vaddr, srd, n_dw, exec_lanes=None, sleep=4):
    a(f"s_mov_b32 s{S_SPIN}, {SPIN_MAX}")
    a.label(label)
    if n_dw == 1:
        a(f"buffer_load_dword v10, v{vaddr}, {srd4(srd)}, 0 offen sc1")
    else:
        a(f"buffer_load_dwordx{n_dw} {vr(10, n_dw)}, v{vaddr}, {srd4(srd)}, 0 offen sc1")
    a("s_waitcnt vmcnt(0)")
    a(f"v_cmp_ne_u32 vcc, s{S_NONCE}, v10")
    for i in range(1, n_dw):
        a(f"v_cmp_ne_u32 s[30:31], s{S_NONCE}, v{10 + i}\ns_or_b64 vcc, vcc, s[30:31]")
    a(f"s_cbranch_vccz {label}_ok\ns_sleep {sleep}")
    spin_back(a, label)
    a.label(label + "_ok")


def poll2(a, label, va, vb, srd, sleep=4):
    a(f"s_mov_b32 s{S_SPIN}, {SPIN_MAX}")
    a.label(label)
    a(f"buffer_load_dword v10, v{va}, {srd4(srd)}, 0 offen sc1")
    a(f"buffer_load_dword v11, v{vb}, {srd4(srd)}, 0 offen sc1")
    a("s_waitcnt vmcnt(0)")
    a(f"v_cmp_ne_u32 vcc, s{S_NONCE}, v10\nv_cmp_ne_u32 s[30:31], s{S_NONCE}, v11\ns_or_b64 vcc, vcc, s[30:31]")
    a(f"s_cbranch_vccz {label}_ok\ns_sleep {sleep}")
    spin_back(a, label)
    a.label(label + "_ok")


def spin_back(a, label):
    a(f"s_sub_u32 s{S_SPIN}, s{S_SPIN}, 1\ns_cmp_lg_u32 s{S_SPIN}, 0\ns_cbranch_scc1 {label}")


def get_nonce(a, label, t=10):
    a(f"v_mov_b32 v{t}, 0\ns_mov_b32 s{S_SPIN}, {SPIN_MAX}")
    a.label(label)
    a(f"buffer_load_dword v{t + 1}, v{t}, {srd4(RF)}, 0 offen sc1")
    a("s_waitcnt vmcnt(0)")
    a(f"v_readfirstlane_b32 s{S_NONCE}, v{t + 1}")
    a(f"s_cmp_lg_u32 s{S_NONCE}, 0\ns_cbranch_scc1 {label}_ok\ns_sleep 2")
    spin_back(a, label)
    a.label(label + "_ok")


def store_flag(a, ws_off, s_index, vtmp=10):
    a.srd(RF, P_WS, ws_off, FLAG_AREA)
    a(f"""
    s_lshl_b32 s29, s{s_index}, 7
    v_mov_b32 v{vtmp}, s29
    v_mov_b32 v{vtmp + 1}, s{S_NONCE}
    s_mov_b64 s[30:31], exec
    s_mov_b64 exec, 1
    buffer_store_dword v{vtmp + 1}, v{vtmp}, {srd4(RF)}, 0 offen sc1
    s_mov_b64 exec, s[30:31]
    """)


ACC, FR, CSR = 64, 32, 128
PR = 160
V_XA, V_XB, V_WA, V_WB = 8, 12, 16, 18


def half_wave_sum(a, regs):
    for ctl in ("row_shr:1", "row_shr:2", "row_shr:4", "row_shr:8"):
        for r in regs:
            a(f"v_add_f32_dpp v{r}, v{r}, v{r} {ctl} row_mask:0xf bank_mask:0xf")
    for r in regs:
        a(f"v_add_f32_dpp v{r}, v{r}, v{r} row_bcast:15 row_mask:0xa bank_mask:0xf")


def p1_produce(a):
    a.srd(RA, P_X, 0, S * D * 2)
    a.srd(RB, P_WR, 0, D * 2)
    a.srd(RC, P_WQKV, 0, D * 3 * D * 2)
    a.srd(RF, P_DBG, 0, 256)
    a(f"""
    v_and_b32 v3, 31, v{VL}
    v_lshrrev_b32 v4, 5, v{VL}
    s_lshl_b32 s29, s2, 3
    s_lshl_b32 s30, s{S_W}, 1
    s_add_u32 s29, s29, s30
    v_add_u32 v5, s29, v4
    v_mul_u32_u24 v6, 1280, v5
    v_lshlrev_b32 v7, 4, v3
    v_lshlrev_b32 v8, 3, v3
    v_add_u32 v8, 1024, v8
    v_add_u32 v9, v6, v7
    v_add_u32 v10, v6, v8
    buffer_load_dwordx4 v[12:15], v9, {srd4(RA)}, 0 offen
    buffer_load_dwordx4 v[16:19], v9, {srd4(RA)}, 0 offen offset:512
    buffer_load_dwordx2 v[20:21], v10, {srd4(RA)}, 0 offen
    buffer_load_dwordx4 v[24:27], v7, {srd4(RB)}, 0 offen
    buffer_load_dwordx4 v[28:31], v7, {srd4(RB)}, 0 offen offset:512
    buffer_load_dwordx2 v[32:33], v8, {srd4(RB)}, 0 offen
    v_lshlrev_b32 v40, 2, v{VL}
    s_mul_i32 s29, s{S_TT}, 40
    s_mul_i32 s30, s{S_W}, 10
    s_add_u32 s29, s29, s30
    s_mul_i32 s29, s29, 3840
    s_min_u32 s30, s{S_CT}, 14
    s_lshl_b32 s30, s30, 8
    s_add_u32 s29, s29, s30
    """)
    for i in range(10):
        a(f"buffer_load_dword v{44 + i}, v40, {srd4(RC)}, s29 offen")
        if i < 9:
            a("s_add_u32 s29, s29, 3840")
    a(f"""
    v_mov_b32 v34, 0
    v_mov_b32 v35, 0
    v_mov_b32 v36, 0
    v_mov_b32 v37, 0
    v_mov_b32 v56, 0
    v_mov_b32 v57, 0
    s_mov_b32 s30, {ONES}
    s_waitcnt vmcnt(10)
    """)
    for i in range(10):
        a(f"v_dot2_f32_bf16 v34, v{12 + i}, s30, v34")
        a(f"v_dot2_f32_bf16 v35, v{12 + i}, v{12 + i}, v35")
        a(f"v_dot2_f32_bf16 v36, v{12 + i}, v{24 + i}, v36")
        a(f"v_dot2_f32_bf16 v37, v{24 + i}, s30, v37")
    a("s_nop 3")
    half_wave_sum(a, [34, 35, 36, 37])
    a(f"""
    s_mov_b32 s30, {hex(f32bits(1.0 / 640))}
    v_mul_f32 v34, s30, v34
    v_mul_f32 v35, s30, v35
    v_fma_f32 v35, -v34, v34, v35
    v_max_f32 v35, 0, v35
    v_add_f32 v35, {hex(f32bits(1e-5))}, v35
    v_rsq_f32 v35, v35
    v_fma_f32 v36, -v34, v37, v36
    s_mov_b32 s30, 0x00003f80
    s_mov_b32 s31, 0x3f800000
    v_mul_f32 v36, v36, v35
    v_ashrrev_i32 v38, 31, v36
    v_or_b32 v38, 0x80000000, v38
    v_xor_b32 v38, v38, v36
    v_and_b32 v38, 0xfffff800, v38
    v_or_b32 v38, v38, v5
    s_waitcnt vmcnt(0)
    """)
    for i in range(10):
        a(f"v_dot2_f32_bf16 v56, v{44 + i}, s30, v56")
        a(f"v_dot2_f32_bf16 v57, v{44 + i}, s31, v57")
    a(f"""
    s_lshl_b32 s29, s{S_W}, 9
    s_add_u32 s29, s29, {3 * SLOT}
    v_lshlrev_b32 v58, 3, v{VL}
    v_add_u32 v59, s29, v58
    s_nop 1
    ds_write_b64 v59, v[56:57]
    """)
    a(f"""
    v_mov_b32 v{PR}, v34
    v_mov_b32 v{PR + 1}, v35
    v_mov_b32 v{PR + 2}, v36
    v_mov_b32 v{PR + 3}, v38
    v_mov_b32 v{PR + 4}, v5
    """)


def p1_publish_stats(a, label):
    T = 170
    get_nonce(a, label, T)
    a(f"v_mov_b32 v{T}, {LDS_NONCE}\nv_mov_b32 v{T + 1}, s{S_NONCE}\nds_write_b32 v{T}, v{T + 1}")
    a.srd(RA, P_WS, WS_STAT, WS_CSP - WS_STAT)
    a.srd(RB, P_WS, WS_STATG, S * 16)
    a(f"""
    v_mov_b32 v{T + 2}, v{PR}
    v_mov_b32 v{T + 3}, s{S_NONCE}
    v_mov_b32 v{T + 4}, v{PR + 1}
    v_mov_b32 v{T + 5}, s{S_NONCE}
    v_lshlrev_b32 v{T + 6}, 3, v{PR + 4}
    v_lshlrev_b32 v{T + 7}, 2, v{PR + 4}
    v_lshlrev_b32 v{T + 8}, 4, v{PR + 4}
    s_mov_b32 s29, {WS_R - WS_STAT}
    s_mov_b32 s30, {WS_KEY - WS_STAT}
    v_and_b32 v{T + 9}, 31, v{VL}
    v_cmp_eq_u32 vcc, 31, v{T + 9}
    s_and_saveexec_b64 s[56:57], vcc
    buffer_store_dwordx4 v[{T + 2}:{T + 5}], v{T + 8}, {srd4(RB)}, 0 offen sc1
    buffer_store_dwordx2 v[{PR}:{PR + 1}], v{T + 6}, {srd4(RA)}, 0 offen sc1
    buffer_store_dword v{PR + 2}, v{T + 7}, {srd4(RA)}, s29 offen sc1
    buffer_store_dword v{PR + 3}, v{T + 7}, {srd4(RA)}, s30 offen sc1
    s_mov_b64 exec, s[56:57]
    """)


def p1_publish_cs(a):
    T = 184
    a(f"""
    v_lshlrev_b32 v{T + 8}, 3, v{VL}
    v_add_u32 v{T + 9}, {3 * SLOT}, v{T + 8}
    ds_read_b64 v[{T}:{T + 1}], v{T + 9}
    ds_read_b64 v[{T + 2}:{T + 3}], v{T + 9} offset:512
    ds_read_b64 v[{T + 4}:{T + 5}], v{T + 9} offset:1024
    ds_read_b64 v[{T + 6}:{T + 7}], v{T + 9} offset:1536
    """)
    a.srd(RA, P_WS, WS_CSP, CSP_BYTES)
    a(f"""
    s_lshl_b32 s29, s{S_CT}, 4
    s_add_u32 s29, s29, s{S_TT}
    s_lshl_b32 s29, s29, 10
    v_lshlrev_b32 v{T + 8}, 4, v{VL}
    s_waitcnt lgkmcnt(0)
    v_add_f32 v{T}, v{T}, v{T + 2}
    v_add_f32 v{T + 1}, v{T + 1}, v{T + 3}
    v_add_f32 v{T + 4}, v{T + 4}, v{T + 6}
    v_add_f32 v{T + 5}, v{T + 5}, v{T + 7}
    v_add_f32 v{T}, v{T}, v{T + 4}
    v_add_f32 v{T + 2}, v{T + 1}, v{T + 5}
    v_mov_b32 v{T + 1}, s{S_NONCE}
    v_mov_b32 v{T + 3}, s{S_NONCE}
    buffer_store_dwordx4 v[{T}:{T + 3}], v{T + 8}, {srd4(RA)}, s29 offen sc1
    """)


def p1_reads(a, stage, ks, fset):
    slot = stage % 4
    base = (slot & 1) * SLOT
    xa = (V_XB if slot >= 2 else V_XA) + ks
    wa = V_WB if slot >= 2 else V_WA
    f = FR + 16 * fset
    a(f"ds_read_b128 {vr(f, 4)}, v{xa} offset:{base}")
    a(f"ds_read_b128 {vr(f + 4, 4)}, v{xa} offset:{base + 4096}")
    for b in range(2):
        for jp in range(2):
            a(f"ds_read_b64_tr_b16 {vr(f + 8 + 4 * b + 2 * jp, 2)}, v{wa + b} offset:{base + ks * 4096 + jp * 1024}")


def p1_mfmas(a, fset, vmode):
    f = FR + 16 * fset
    for T in range(2):
        for B in range(2):
            acc = vr(ACC + 32 * T + 16 * B, 16)
            wf, xf = vr(f + 8 + 4 * B, 4), vr(f + 4 * T, 4)
            a(f"{MF32} {acc}, {xf}, {wf}, {acc}" if vmode else f"{MF32} {acc}, {wf}, {xf}, {acc}")


def p1_main(a, vmode, pfx):
    p1_reads(a, 0, 0, 0)
    for st in range(10):
        for ks in range(4):
            cur, nxt = ks & 1, (ks + 1) & 1
            if ks < 3:
                p1_reads(a, st, ks + 1, nxt)
                a("s_waitcnt lgkmcnt(6)")
            elif st < 9:
                if st == 1:
                    a("s_waitcnt vmcnt(0)")
                a("s_barrier")
                if st == 1:
                    a(f"s_cmp_lg_u32 s{S_W}, 0\ns_cbranch_scc1 L_{pfx}_nof0")
                    store_flag(a, WS_F0, 2, 28)
                    a.label(f"L_{pfx}_nof0")
                p1_reads(a, st + 1, 0, nxt)
                a("s_waitcnt lgkmcnt(6)")
            else:
                a("s_waitcnt lgkmcnt(0)")
            p1_mfmas(a, cur, vmode)
            if st == 0 and ks == 1:
                p1_publish_stats(a, f"L_{pfx}_nonce")
                a(f"s_cmp_lg_u32 s{S_W}, 0\ns_cbranch_scc1 L_{pfx}_nocs")
                p1_publish_cs(a)
                a.label(f"L_{pfx}_nocs")
                a("s_waitcnt lgkmcnt(0)")
        if st == 4:
            stamp(a, 3)


def p1_addresses(a):
    a(f"""
    v_and_b32 v3, 31, v{VL}
    v_lshrrev_b32 v4, 5, v{VL}
    v_lshrrev_b32 v5, 1, v3
    v_and_b32 v5, 7, v5
    s_and_b32 s29, s{S_W}, 1
    s_lshl_b32 s29, s29, 13
    v_lshlrev_b32 v6, 7, v3
    v_add_u32 v6, s29, v6
    """)
    for ks in range(4):
        a(f"v_add_u32 v7, {2 * ks}, v4\nv_xor_b32 v7, v7, v5\nv_lshl_add_u32 v{V_XA + ks}, v7, 4, v6")
        a(f"v_add_u32 v{V_XB + ks}, 0x10000, v{V_XA + ks}")
    a(f"""
    v_lshrrev_b32 v5, 4, v{VL}
    v_and_b32 v5, 1, v5
    v_and_b32 v6, 3, v{VL}
    v_lshl_add_u32 v5, v5, 2, v6
    v_bfe_u32 v6, v{VL}, 2, 2
    v_lshl_add_u32 v7, v4, 3, v6
    v_lshlrev_b32 v7, 8, v7
    v_add_u32 v7, 16384, v7
    v_and_b32 v28, 4, v5
    v_and_b32 v29, 1, v5
    v_lshl_or_b32 v28, v29, 1, v28
    v_bfe_u32 v29, v5, 1, 1
    v_or_b32 v28, v28, v29
    s_cmp_ge_u32 s{S_CT}, 10
    s_cselect_b64 vcc, -1, 0
    s_lshr_b32 s29, s{S_W}, 1
    s_lshl_b32 s29, s29, 4
    v_cndmask_b32 v28, v28, v5, vcc
    v_add_u32 v28, s29, v28
    """)
    for b in range(2):
        a(f"""
        v_add_u32 v29, {8 * b}, v28
        v_lshrrev_b32 v30, 1, v29
        v_lshlrev_b32 v31, 2, v6
        v_xor_b32 v30, v30, v31
        v_and_b32 v29, 1, v29
        v_lshlrev_b32 v29, 3, v29
        v_lshl_add_u32 v29, v30, 4, v29
        v_add_u32 v{V_WA + b}, v29, v7
        v_add_u32 v{V_WB + b}, 0x10000, v{V_WA + b}
        """)


def p1_epilogue_qk(a):
    a(f"""
    s_cmp_ge_u32 s{S_CT}, 5
    s_cselect_b32 s29, {WS_KP}, {WS_QP}
    s_cselect_b32 s56, 1.0, {hex(f32bits(QSCALE))}
    s_cselect_b32 s30, 5, 0
    s_sub_u32 s57, s{S_CT}, s30
    """)
    a.srd(RA, P_WS, "s29", QP_BYTES)
    a(f"""
    v_and_b32 v3, 31, v{VL}
    v_lshrrev_b32 v4, 5, v{VL}
    s_and_b32 s29, s{S_W}, 1
    s_lshl_b32 s29, s29, 6
    v_add_u32 v5, s29, v3
    v_lshlrev_b32 v6, 2, v5
    v_add_u32 v6, {LDS_RS}, v6
    ds_read_b32 v8, v6
    ds_read_b32 v9, v6 offset:512
    ds_read_b32 v10, v6 offset:128
    ds_read_b32 v11, v6 offset:640
    s_lshr_b32 s58, s{S_W}, 1
    s_lshl_b32 s29, s58, 8
    v_lshlrev_b32 v6, 5, v4
    v_add_u32 v6, s29, v6
    v_add_u32 v6, {LDS_CS}, v6
    """)
    for b in range(2):
        for q in range(4):
            a(f"ds_read_b128 {vr(CSR + 16 * b + 4 * q, 4)}, v6 offset:{(8 * b + 4 * (q >> 1) + (q & 1)) * 16}")
    a(f"""
    s_lshl_b32 s29, s{S_TT}, 7
    v_add_u32 v5, s29, v5
    v_lshlrev_b32 v5, 4, v5
    v_lshl_add_u32 v5, v4, 15, v5
    s_lshl_b32 s59, s57, 4
    s_lshl_b32 s29, s58, 3
    s_add_u32 s59, s59, s29
    s_lshl_b32 s59, s59, 15
    s_waitcnt lgkmcnt(8)
    v_mul_f32 v8, s56, v8
    v_mul_f32 v9, s56, v9
    v_mul_f32 v10, s56, v10
    v_mul_f32 v11, s56, v11
    s_waitcnt lgkmcnt(0)
    """)
    for T in range(2):
        sc = 8 + 2 * T
        for B in range(2):
            acc = ACC + 32 * T + 16 * B
            cs = CSR + 16 * B
            for r in range(0, 16, 2):
                a(f"v_pk_mul_f32 {vr(FR + 16, 2)}, {vr(cs + r, 2)}, {vr(sc, 2)} op_sel:[0,1] op_sel_hi:[1,1]")
                a(f"v_pk_fma_f32 {vr(acc + r, 2)}, {vr(acc + r, 2)}, {vr(sc, 2)}, {vr(FR + 16, 2)} op_sel_hi:[1,0,1]")
            for r in range(8):
                a(f"v_cvt_pk_bf16_f32 v{acc + r}, v{acc + 2 * r}, v{acc + 2 * r + 1}")
            for u in range(2):
                a(f"s_add_u32 s29, s59, {(4 * B + 2 * u) * PAIR_BYTES + T * 512}")
                a(f"buffer_store_dwordx4 {vr(acc + 4 * u, 4)}, v5, {srd4(RA)}, s29 offen sc1")


def p1_epilogue_v(a):
    a.srd(RA, P_WS, WS_VI, VI_BYTES)
    a(f"""
    v_and_b32 v3, 31, v{VL}
    v_lshrrev_b32 v4, 5, v{VL}
    s_lshr_b32 s58, s{S_W}, 1
    s_lshl_b32 s29, s58, 6
    v_add_u32 v5, s29, v3
    v_lshlrev_b32 v6, 2, v5
    v_add_u32 v6, {LDS_CS}, v6
    ds_read_b32 v8, v6
    ds_read_b32 v10, v6 offset:128
    s_and_b32 s29, s{S_W}, 1
    s_lshl_b32 s29, s29, 8
    v_lshlrev_b32 v6, 4, v4
    v_add_u32 v6, s29, v6
    v_add_u32 v6, {LDS_RS}, v6
    s_sub_u32 s57, s{S_CT}, 10
    s_lshl_b32 s29, s57, 7
    v_add_u32 v5, s29, v5
    v_lshlrev_b32 v5, 5, v5
    v_lshl_add_u32 v5, v4, 4, v5
    s_lshl_b32 s59, s{S_TT}, 2
    s_and_b32 s29, s{S_W}, 1
    s_lshl_b32 s29, s29, 1
    s_add_u32 s59, s59, s29
    s_mul_i32 s59, s59, {VT_BYTES}
    """)
    for T in range(2):
        for q in range(4):
            a(f"ds_read_b128 {vr(CSR + 4 * q, 4)}, v6 offset:{T * 128 + q * 32}")
            a(f"ds_read_b128 {vr(CSR + 16 + 4 * q, 4)}, v6 offset:{512 + T * 128 + q * 32}")
        a("s_waitcnt lgkmcnt(0)")
        for B in range(2):
            acc = ACC + 32 * T + 16 * B
            csr = 8 + 2 * B
            for r in range(0, 16, 2):
                a(f"v_pk_mul_f32 {vr(FR + 16, 2)}, {vr(CSR + 16 + r, 2)}, {vr(csr, 2)} op_sel_hi:[1,0]")
                a(f"v_pk_fma_f32 {vr(acc + r, 2)}, {vr(acc + r, 2)}, {vr(CSR + r, 2)}, {vr(FR + 16, 2)}")
            for r in range(8):
                a(f"v_cvt_pk_bf16_f32 v{acc + r}, v{acc + 2 * r}, v{acc + 2 * r + 1}")
            for j in range(2):
                a(f"s_add_u32 s29, s59, {T * VT_BYTES + j * VJ_BYTES + B * 1024}")
                a(f"buffer_store_dwordx4 {vr(acc + 4 * j, 4)}, v5, {srd4(RA)}, s29 offen sc1")
    a(f"""
    s_cmp_lg_u32 s57, 0
    s_cbranch_scc1 L_p1_noones
    s_cmp_lg_u32 s58, 0
    s_cbranch_scc1 L_p1_noones
    v_mov_b32 v8, {ONES}
    v_mov_b32 v9, {ONES}
    v_mov_b32 v10, {ONES}
    v_mov_b32 v11, {ONES}
    v_and_b32 v5, 1, v{VL}
    v_lshlrev_b32 v5, 4, v5
    v_bfe_u32 v6, v{VL}, 1, 2
    v_mul_u32_u24 v6, {VJ_BYTES}, v6
    v_add_u32 v5, v5, v6
    v_add_u32 v5, {640 * 32}, v5
    v_cmp_gt_u32 vcc, 8, v{VL}
    s_and_saveexec_b64 s[30:31], vcc
    buffer_store_dwordx4 v[8:11], v5, {srd4(RA)}, s59 offen sc1
    s_mov_b64 exec, s[30:31]
    """)
    a.label("L_p1_noones")


def p1_loader(a, which):
    pfx = "x" if which == 0 else "w"
    if which == 0:
        a.srd(RA, P_X, 0, S * D * 2)
        a(f"""
        v_lshrrev_b32 v3, 3, v{VL}
        v_mul_u32_u24 v3, 1280, v3
        v_lshrrev_b32 v4, 4, v{VL}
        v_and_b32 v5, 7, v{VL}
        v_xor_b32 v5, v5, v4
        v_lshl_add_u32 v20, v5, 4, v3
        v_xor_b32 v21, 64, v20
        s_lshl_b32 s29, s{S_TT}, 7
        s_mul_i32 s56, s29, 1280
        """)
    else:
        a.srd(RA, P_WQKV, 0, D * 3 * D * 2)
        a(f"""
        v_lshrrev_b32 v4, 4, v{VL}
        v_and_b32 v5, 15, v{VL}
        v_lshlrev_b32 v6, 2, v4
        v_xor_b32 v5, v5, v6
        v_mul_u32_u24 v7, 3840, v4
        v_lshl_add_u32 v20, v5, 4, v7
        s_lshl_b32 s56, s{S_CT}, 8
        """)

    def issue(stage):
        slot = (stage % 4) * SLOT + which * 16384
        for q in range(16):
            a(f"s_mov_b32 m0, {slot + q * 1024}")
            if which == 0:
                a(f"s_add_u32 s57, s56, {stage * 128 + q * 10240}")
                a(f"buffer_load_dwordx4 v{20 + (q & 1)}, {srd4(RA)}, s57 offen lds")
            else:
                a(f"s_add_u32 s57, s56, {(stage * 64 + 4 * q) * 3840}")
                a(f"buffer_load_dwordx4 v20, {srd4(RA)}, s57 offen lds")
    for st in range(3):
        issue(st)
    G = 2 if which == 0 else 16
    for s_ in range(10):
        if s_ == 0:
            a("s_waitcnt vmcnt(32)")
        elif s_ <= 7:
            a("s_waitcnt vmcnt(16)")
        elif s_ == 8:
            a(f"s_waitcnt vmcnt({16 + G})")
        else:
            a(f"s_waitcnt vmcnt({G})")
        a("s_barrier")
        if s_ == 2:
            nonce_from_lds(a)
        if 1 <= s_ <= 7:
            issue(s_ + 2)
        if s_ == 7:
            gather_issue(a, which)
    gather_finish(a, which, pfx)
    a("s_barrier")


def nonce_from_lds(a):
    a(f"""
    v_mov_b32 v10, {LDS_NONCE}
    ds_read_b32 v11, v10
    s_waitcnt lgkmcnt(0)
    v_readfirstlane_b32 s{S_NONCE}, v11
    """)


def gather_issue(a, which):
    if which == 0:
        a.srd(RB, P_WS, WS_STATG, S * 16)
        a(f"""
        s_lshl_b32 s29, s{S_TT}, 11
        v_lshlrev_b32 v22, 4, v{VL}
        v_add_u32 v22, s29, v22
        buffer_load_dwordx4 v[32:35], v22, {srd4(RB)}, 0 offen sc1
        buffer_load_dwordx4 v[36:39], v22, {srd4(RB)}, 0 offen offset:1024 sc1
        """)
    else:
        a.srd(RB, P_WS, WS_CSP, CSP_BYTES)
        a(f"""
        s_lshl_b32 s58, s{S_CT}, 14
        v_lshlrev_b32 v22, 4, v{VL}
        s_mov_b32 s59, s58
        """)
        for i in range(16):
            a(f"buffer_load_dwordx4 {vr(32 + 4 * i, 4)}, v22, {srd4(RB)}, s59 offen sc1")
            if i < 15:
                a("s_add_u32 s59, s59, 1024")


def gather_finish(a, which, pfx):
    n = 2 if which == 0 else 16
    a(f"s_mov_b32 s{S_SPIN}, {SPIN_MAX}")
    a.label(f"L_g{pfx}_check")
    a("s_waitcnt vmcnt(0)")
    a(f"v_cmp_ne_u32 vcc, s{S_NONCE}, v33")
    for i in range(n):
        for r in (1, 3):
            if i == 0 and r == 1:
                continue
            a(f"v_cmp_ne_u32 s[30:31], s{S_NONCE}, v{32 + 4 * i + r}\ns_or_b64 vcc, vcc, s[30:31]")
    a(f"s_cbranch_vccz L_g{pfx}_ok\ns_sleep 4")
    gather_issue(a, which)
    spin_back(a, f"L_g{pfx}_check")
    a("s_waitcnt vmcnt(0)")
    a.label(f"L_g{pfx}_ok")
    if which == 0:
        a(f"""
        v_mul_f32 v32, v32, v34
        v_mul_f32 v36, v36, v38
        v_sub_f32 v32, 0, v32
        v_sub_f32 v36, 0, v36
        v_lshlrev_b32 v22, 2, v{VL}
        v_add_u32 v22, {LDS_RS}, v22
        ds_write_b32 v22, v34
        ds_write_b32 v22, v38 offset:256
        ds_write_b32 v22, v32 offset:512
        ds_write_b32 v22, v36 offset:768
        """)
    else:
        for i in range(1, 16):
            a(f"v_add_f32 v32, v32, v{32 + 4 * i}\nv_add_f32 v34, v34, v{34 + 4 * i}")
        a(f"""
        v_mov_b32 v33, v34
        v_lshlrev_b32 v22, 3, v{VL}
        v_add_u32 v22, {LDS_CS}, v22
        ds_write_b64 v22, v[32:33]
        """)
    a("s_waitcnt lgkmcnt(0)")


def top2(a, srd, vk, s_i0, s_i1):
    a(f"v_lshlrev_b32 v3, 4, v{VL}")
    for i in range(8):
        a(f"buffer_load_dwordx4 {vr(vk + 4 * i, 4)}, v3, {srd4(srd)}, 0 offen offset:{(i % 4) * 1024} sc1")
        if i == 3:
            a("v_add_u32 v3, 4096, v3")
    m1, m2, n1, n2, t = vk + 32, vk + 33, vk + 34, vk + 35, vk + 36
    a(f"v_mov_b32 v{m1}, 0\nv_mov_b32 v{m2}, 0")
    for i in range(8):
        a(f"s_waitcnt vmcnt({7 - i})")
        for r in range(4):
            a(f"v_med3_u32 v{m2}, v{m1}, v{m2}, v{vk + 4 * i + r}")
            a(f"v_max_u32 v{m1}, v{m1}, v{vk + 4 * i + r}")
    for ctl in ("row_shr:1 row_mask:0xf", "row_shr:2 row_mask:0xf", "row_shr:4 row_mask:0xf", "row_shr:8 row_mask:0xf",
                "row_bcast:15 row_mask:0xa", "row_bcast:31 row_mask:0xc"):
        a(f"v_mov_b32 v{n1}, 0\nv_mov_b32 v{n2}, 0\ns_nop 1")
        a(f"v_mov_b32_dpp v{n1}, v{m1} {ctl} bank_mask:0xf")
        a(f"v_mov_b32_dpp v{n2}, v{m2} {ctl} bank_mask:0xf")
        a(f"v_min_u32 v{t}, v{m1}, v{n1}")
        a(f"v_max_u32 v{m1}, v{m1}, v{n1}")
        a(f"v_max3_u32 v{m2}, v{t}, v{m2}, v{n2}")
    a(f"s_nop 0\nv_readlane_b32 s{s_i0}, v{m1}, 63\nv_readlane_b32 s{s_i1}, v{m2}, 63")
    a(f"s_and_b32 s{s_i0}, s{s_i0}, 0x7ff\ns_and_b32 s{s_i1}, s{s_i1}, 0x7ff")


S_I0, S_I1, S_CB, S_KS = 60, 61, 68, 69
L_GW, L_DW, L_SCR = LDS_AUX, LDS_AUX + 16384, LDS_AUX + 24576


def read_idx(a, label):
    a.srd(RC, P_WS, WS_IDX, 16)
    a(f"s_mov_b32 s{S_SPIN}, {SPIN_MAX}\nv_mov_b32 v5, 0")
    a.label(label)
    a(f"""
    buffer_load_dwordx4 v[8:11], v5, {srd4(RC)}, 0 offen sc1
    s_waitcnt vmcnt(0)
    v_readfirstlane_b32 s{S_I0}, v8
    v_readfirstlane_b32 s29, v9
    v_readfirstlane_b32 s{S_I1}, v10
    v_readfirstlane_b32 s30, v11
    s_xor_b32 s29, s29, s{S_NONCE}
    s_xor_b32 s30, s30, s{S_NONCE}
    s_or_b32 s29, s29, s30
    s_cmp_eq_u32 s29, 0
    s_cbranch_scc1 {label}_ok
    s_sleep 8
    """)
    spin_back(a, label)
    a.label(label + "_ok")


def moe_select(a):
    a.srd(RC, P_WS, WS_F0, FLAG_AREA)
    a(f"v_lshlrev_b32 v5, 7, v{VL}\ns_mov_b32 s{S_SPIN}, {SPIN_MAX}")
    a.label("L_sel_f0")
    for i in range(4):
        a(f"s_mov_b32 s29, {i * 8192}\nbuffer_load_dword v{10 + i}, v5, {srd4(RC)}, s29 offen sc1")
    a("s_waitcnt vmcnt(0)")
    a(f"v_cmp_ne_u32 vcc, s{S_NONCE}, v10")
    for i in range(1, 4):
        a(f"v_cmp_ne_u32 s[30:31], s{S_NONCE}, v{10 + i}\ns_or_b64 vcc, vcc, s[30:31]")
    a("s_cbranch_vccz L_sel_f0_ok\ns_sleep 8")
    spin_back(a, "L_sel_f0")
    a.label("L_sel_f0_ok")
    a.srd(RC, P_WS, WS_KEY, S * 4)
    top2(a, RC, 64, S_I0, S_I1)
    a.srd(RC, P_WS, WS_IDX, 16)
    a(f"""
    v_mov_b32 v8, s{S_I0}
    v_mov_b32 v9, s{S_NONCE}
    v_mov_b32 v10, s{S_I1}
    v_mov_b32 v11, s{S_NONCE}
    v_mov_b32 v12, 0
    s_mov_b64 exec, 1
    buffer_store_dwordx4 v[8:11], v12, {srd4(RC)}, 0 offen sc1
    s_mov_b64 exec, -1
    """)


def sigmoid_like(a, dst, src, tmp):
    a(f"s_mov_b32 s29, {hex(f32bits(-LOG2E))}")
    for d, s_ in zip(dst, src):
        a(f"v_mul_f32 v{d}, s29, v{s_}")
    for d in dst:
        a(f"v_exp_f32 v{d}, v{d}")
    a("s_nop 0")
    for d in dst:
        a(f"v_add_f32 v{d}, 1.0, v{d}")
    for d in dst:
        a(f"v_rcp_f32 v{d}, v{d}")
    a("s_nop 0")


def moe_tasks(a):
    a(f"""
    s_mul_i32 s{S_CB}, s2, 205
    s_lshr_b32 s{S_CB}, s{S_CB}, 11
    s_mul_i32 s29, s{S_CB}, 10
    s_sub_u32 s{S_KS}, s2, s29
    """)
    a.srd(RA, P_WG, 0, D * F * 2)
    a.srd(RB, P_WU, 0, D * F * 2)
    a.srd(RD, P_WD, 0, F * D * 2)
    a(f"""
    v_lshrrev_b32 v3, 3, v{VL}
    v_and_b32 v4, 7, v{VL}
    v_mul_u32_u24 v5, 3072, v3
    v_lshl_add_u32 v5, v4, 4, v5
    v_mul_u32_u24 v6, 1280, v3
    v_lshl_add_u32 v6, v4, 4, v6
    s_mul_i32 s56, s{S_KS}, {64 * 3072}
    s_lshl_b32 s29, s{S_CB}, 7
    s_add_u32 s56, s56, s29
    s_mul_i32 s57, s{S_CB}, {64 * 1280}
    s_lshl_b32 s29, s{S_KS}, 7
    s_add_u32 s57, s57, s29
    """)
    for q in range(8):
        for mtx, srd in ((0, RA), (1, RB)):
            a(f"s_mov_b32 m0, {L_GW + mtx * 8192 + q * 1024}")
            a(f"s_add_u32 s58, s56, {q * 8 * 3072}")
            a(f"buffer_load_dwordx4 v5, {srd4(srd)}, s58 offen lds")
        if q % 2 == 1:
            a("s_waitcnt vmcnt(4)")
    for q in range(8):
        a(f"s_mov_b32 m0, {L_DW + q * 1024}")
        a(f"s_add_u32 s58, s57, {q * 8 * 1280}")
        a(f"buffer_load_dwordx4 v6, {srd4(RD)}, s58 offen lds")
        if q % 4 == 3:
            a("s_waitcnt vmcnt(4)")
    read_idx(a, "L_g_idx")
    a.srd(RA, P_X, 0, S * D * 2)
    a.srd(RB, P_WS, WS_STAT, S * 8)
    a(f"""
    v_and_b32 v5, 15, v{VL}
    v_lshrrev_b32 v6, 4, v{VL}
    v_mov_b32 v7, {OOB >> 11}
    v_mov_b32 v8, s{S_I0}
    v_mov_b32 v9, s{S_I1}
    v_cmp_eq_u32 vcc, 0, v5
    v_cmp_eq_u32 s[30:31], 1, v5
    s_nop 0
    v_cndmask_b32 v7, v7, v8, vcc
    v_cndmask_b32 v7, v7, v9, s[30:31]
    v_mul_u32_u24 v8, 1280, v7
    v_lshl_add_u32 v8, v6, 4, v8
    v_lshlrev_b32 v9, 3, v7
    s_lshl_b32 s29, s{S_KS}, 7
    buffer_load_dwordx4 v[16:19], v8, {srd4(RA)}, s29 offen
    buffer_load_dwordx4 v[20:23], v8, {srd4(RA)}, s29 offen offset:64
    buffer_load_dwordx2 v[12:13], v9, {srd4(RB)}, 0 offen sc1
    v_bfe_u32 v8, v{VL}, 2, 2
    v_and_b32 v9, 3, v{VL}
    v_lshl_add_u32 v8, v6, 3, v8
    v_lshlrev_b32 v8, 7, v8
    v_lshl_add_u32 v8, v9, 3, v8
    v_add_u32 v24, {L_GW}, v8
    v_add_u32 v25, {L_DW}, v8
    """)
    for r in range(32):
        a(f"v_mov_b32 v{32 + r}, 0")
    a("""
    s_waitcnt vmcnt(0)
    v_mul_f32 v12, v12, v13
    v_sub_f32 v12, 0, v12
    """)
    for r in range(8):
        a(f"""
        v_lshlrev_b32 v14, 16, v{16 + r}
        v_and_b32 v15, 0xffff0000, v{16 + r}
        v_fma_f32 v14, v14, v13, v12
        v_fma_f32 v15, v15, v13, v12
        v_cvt_pk_bf16_f32 v{16 + r}, v14, v15
        """)
    for st in range(2):
        for mtx in range(2):
            for nb in range(4):
                f = 64 + 4 * (mtx * 4 + nb)
                for sec in range(2):
                    a(f"ds_read_b64_tr_b16 {vr(f + 2 * sec, 2)}, v24 offset:{mtx * 8192 + (32 * st + 4 * sec) * 128 + nb * 32}")
        a("s_waitcnt lgkmcnt(0)")
        for mtx in range(2):
            for nb in range(4):
                acc = vr(32 + 4 * (mtx * 4 + nb), 4)
                a(f"{MF16} {acc}, {vr(16 + 4 * st, 4)}, {vr(64 + 4 * (mtx * 4 + nb), 4)}, {acc}")
    a(f"""
    v_lshlrev_b32 v8, 2, v{VL}
    v_add_u32 v8, {L_SCR}, v8
    s_nop 7
    s_mov_b64 exec, 0xffff
    """)
    for mtx in range(2):
        for nb in range(4):
            for tok in range(2):
                a(f"ds_write_b32 v8, v{32 + 4 * (mtx * 4 + nb) + tok} offset:{(mtx * 2 + tok) * 256 + nb * 64}")
    a.srd(RA, P_WS, WS_PG, 240 * 1024)
    a(f"""
    s_mov_b64 exec, -1
    v_lshlrev_b32 v9, 4, v{VL}
    v_add_u32 v8, {L_SCR}, v9
    s_waitcnt lgkmcnt(0)
    ds_read_b128 v[12:15], v8
    s_lshl_b32 s29, s2, 10
    s_waitcnt lgkmcnt(0)
    buffer_store_dwordx4 v[12:15], v9, {srd4(RA)}, s29 offen sc1
    s_waitcnt vmcnt(0)
    """)
    store_flag(a, WS_FG, 2)
    a.srd(RC, P_WS, WS_FG, FLAG_AREA)
    a(f"""
    s_mul_i32 s29, s{S_CB}, 10
    v_min_u32 v5, 9, v{VL}
    v_add_u32 v5, s29, v5
    v_lshlrev_b32 v5, 7, v5
    """)
    poll(a, "L_d_fg", 5, RC, 1, sleep=8)
    a(f"s_mul_i32 s56, s{S_CB}, 10240\nv_lshlrev_b32 v9, 4, v{VL}")
    for i in range(10):
        a(f"buffer_load_dwordx4 {vr(32 + 4 * i, 4)}, v9, {srd4(RA)}, s56 offen sc1")
        if i < 9:
            a("s_add_u32 s56, s56, 1024")
    for i in range(1, 10):
        a(f"s_waitcnt vmcnt({9 - i})")
        for r in range(4):
            a(f"v_add_f32 v{32 + r}, v{32 + r}, v{32 + 4 * i + r}")
    for r in range(4):
        a(f"v_mov_b32 v{36 + r}, 0")
    a("s_nop 1")
    for r in range(4):
        a(f"v_permlane32_swap_b32 v{32 + r}, v{36 + r}")
    sigmoid_like(a, [40, 41, 42, 43], [32, 33, 34, 35], None)
    for r in range(4):
        a(f"v_mul_f32 v{40 + r}, v{40 + r}, v{32 + r}")
    for r in range(4):
        a(f"v_mul_f32 v{40 + r}, v{40 + r}, v{36 + r}")
    a(f"""
    v_cvt_pk_bf16_f32 v40, v40, v41
    v_cvt_pk_bf16_f32 v41, v42, v43
    v_lshlrev_b32 v8, 3, v{VL}
    v_add_u32 v8, {L_SCR}, v8
    s_mov_b32 exec_lo, -1
    s_mov_b32 exec_hi, 0
    ds_write_b64 v8, v[40:41]
    s_mov_b64 exec, -1
    v_and_b32 v8, 1, v{VL}
    v_lshlrev_b32 v8, 7, v8
    v_lshl_add_u32 v8, v6, 4, v8
    v_add_u32 v8, {L_SCR}, v8
    s_waitcnt lgkmcnt(0)
    ds_read_b128 v[16:19], v8
    ds_read_b128 v[20:23], v8 offset:64
    """)
    for r in range(16):
        a(f"v_mov_b32 v{32 + r}, 0")
    for st in range(2):
        for nb in range(4):
            for sec in range(2):
                a(f"ds_read_b64_tr_b16 {vr(64 + 4 * nb + 2 * sec, 2)}, v25 offset:{(32 * st + 4 * sec) * 128 + nb * 32}")
        a("s_waitcnt lgkmcnt(0)")
        for nb in range(4):
            acc = vr(32 + 4 * nb, 4)
            a(f"{MF16} {acc}, {vr(16 + 4 * st, 4)}, {vr(64 + 4 * nb, 4)}, {acc}")
    a(f"""
    v_lshlrev_b32 v8, 2, v{VL}
    v_add_u32 v8, {L_SCR + 1024}, v8
    s_nop 7
    s_mov_b64 exec, 0xffff
    """)
    for nb in range(4):
        for tok in range(2):
            a(f"ds_write_b32 v8, v{32 + 4 * nb + tok} offset:{tok * 256 + nb * 64}")
    a.srd(RA, P_WS, WS_PY, 240 * 512)
    a(f"""
    s_mov_b32 exec_lo, -1
    s_mov_b32 exec_hi, 0
    v_add_u32 v8, {L_SCR + 1024}, v9
    s_waitcnt lgkmcnt(0)
    ds_read_b128 v[12:15], v8
    s_lshl_b32 s29, s2, 9
    s_waitcnt lgkmcnt(0)
    buffer_store_dwordx4 v[12:15], v9, {srd4(RA)}, s29 offen sc1
    s_mov_b64 exec, -1
    s_waitcnt vmcnt(0)
    """)
    store_flag(a, WS_FD, 2)


def moe_finish(a):
    a(f"s_sub_u32 s{S_KS}, s2, 240")
    read_idx(a, "L_y_idx")
    a.srd(RB, P_WS, WS_R, S * 4)
    a(f"""
    v_lshrrev_b32 v6, 4, v{VL}
    v_mov_b32 v8, s{S_I0}
    v_mov_b32 v9, s{S_I1}
    v_and_b32 v7, 1, v6
    v_cmp_eq_u32 vcc, 0, v7
    s_nop 1
    v_cndmask_b32 v8, v9, v8, vcc
    v_lshlrev_b32 v8, 2, v8
    buffer_load_dword v16, v8, {srd4(RB)}, 0 offen sc1
    """)
    a.srd(RC, P_WS, WS_FD, FLAG_AREA)
    a(f"""
    v_min_u32 v5, 23, v{VL}
    v_mul_u32_u24 v5, 10, v5
    v_add_u32 v5, s{S_KS}, v5
    v_lshlrev_b32 v5, 7, v5
    """)
    poll(a, "L_y_fd", 5, RC, 1, sleep=8)
    a.srd(RA, P_WS, WS_PY, 240 * 512)
    a(f"""
    v_and_b32 v9, 31, v{VL}
    v_lshlrev_b32 v9, 4, v9
    s_lshl_b32 s56, s{S_KS}, 9
    """)
    for i in range(24):
        a(f"buffer_load_dwordx4 {vr(32 + 4 * i, 4)}, v9, {srd4(RA)}, s56 offen sc1")
        if i < 23:
            a("s_add_u32 s56, s56, 5120")
    sigmoid_like(a, [17], [16], None)
    for i in range(1, 24):
        a(f"s_waitcnt vmcnt({23 - i})")
        for r in range(4):
            a(f"v_add_f32 v{32 + r}, v{32 + r}, v{32 + 4 * i + r}")
    for r in range(4):
        a(f"v_mul_f32 v{32 + r}, v{32 + r}, v17")
    a.srd(RA, P_WS, WS_Y, 2 * D * 4)
    a(f"""
    v_and_b32 v8, 15, v{VL}
    v_lshlrev_b32 v8, 4, v8
    v_mul_u32_u24 v7, 2560, v7
    v_add_u32 v8, v8, v7
    s_lshl_b32 s29, s{S_KS}, 8
    s_mov_b32 exec_lo, -1
    s_mov_b32 exec_hi, 0
    buffer_store_dwordx4 v[32:35], v8, {srd4(RA)}, s29 offen sc1
    s_mov_b64 exec, -1
    s_waitcnt vmcnt(0)
    """)
    store_flag(a, WS_FY, S_KS)


def p3_map(a, s_tt64, s_oct):
    a(f"""
    s_and_b32 s29, s2, 7
    s_lshr_b32 s30, s2, 3
    s_and_b32 s31, s30, 3
    s_lshl_b32 s29, s29, 2
    s_add_u32 s{s_tt64}, s29, s31
    s_lshr_b32 s{s_oct}, s30, 2
    """)


def wait_ready(a, label):
    a(f"v_mov_b32 v10, {LDS_READY}\ns_mov_b32 s{S_SPIN}, {SPIN_MAX * 8}")
    a.label(label)
    a(f"""
    ds_read_b32 v11, v10
    s_waitcnt lgkmcnt(0)
    v_readfirstlane_b32 s29, v11
    s_cmp_eq_u32 s29, s{S_NONCE}
    s_cbranch_scc1 {label}_ok
    s_sleep 8
    """)
    spin_back(a, label)
    a.label(label + "_ok")


def wo_loader(a):
    p3_map(a, 56, 57)
    for q in range(5):
        a(f"""
        v_add_u32 v3, {64 * q}, v{VL}
        v_mul_u32_u24 v4, 6554, v3
        v_lshrrev_b32 v4, 16, v4
        v_mul_u32_u24 v5, 10, v4
        v_sub_u32 v5, v3, v5
        v_mul_u32_u24 v4, 1280, v4
        v_lshl_add_u32 v{20 + q}, v5, 4, v4
        """)
    a.srd(RA, P_WO, 0, D * D * 2)
    a("s_mul_i32 s58, s57, 160")
    for g in range(20):
        for q in range(5):
            a(f"s_mov_b32 m0, {g * 5120 + q * 1024}")
            a(f"s_add_u32 s59, s58, {g * 32 * 1280}")
            a(f"buffer_load_dwordx4 v{20 + q}, {srd4(RA)}, s59 offen lds")
        a(f"s_waitcnt vmcnt({OPT['wo_inflight']})")


VB, PACC, FA, VX, VY, VST = 32, 112, 152, 192, 204, 224


def p3_body(a):
    S_T64, S_OC = 56, 57
    p3_map(a, S_T64, S_OC)
    a.srd(RA, P_X, 0, S * D * 2)
    a.srd(RB, P_WS, WS_OM, OM_BYTES)
    a.srd(RC, P_WS, WS_OT, OT_BYTES)
    a.srd(RD, P_WS, WS_STAT, S * 8)
    a(f"""
    v_and_b32 v3, 15, v{VL}
    v_lshrrev_b32 v4, 4, v{VL}
    s_and_b32 s58, s{S_W}, 1
    s_lshr_b32 s59, s{S_W}, 1
    s_lshl_b32 s60, s{S_T64}, 1
    s_add_u32 s60, s60, s58
    s_lshl_b32 s29, s60, 5
    s_lshl_b32 s30, s59, 4
    s_add_u32 s29, s29, s30
    v_add_u32 v21, s29, v3
    v_mul_u32_u24 v19, 1280, v21
    s_mul_i32 s29, s{S_OC}, 160
    v_lshl_add_u32 v19, v4, 3, v19
    v_add_u32 v19, s29, v19
    """)
    for blk in range(5):
        a(f"buffer_load_dwordx2 {vr(VX + 2 * blk, 2)}, v19, {srd4(RA)}, 0 offen offset:{32 * blk}")
    a.srd(RE, P_WS, WS_F0, 3 * FLAG_AREA)
    a(f"""
    s_lshr_b32 s29, s{S_T64}, 2
    s_lshl_b32 s29, s29, 5
    s_add_u32 s29, s29, {(WS_F2 - WS_F0) // 128}
    v_add_u32 v5, s29, v{VL}
    s_lshl_b32 s30, s{S_T64}, 3
    v_and_b32 v6, 7, v{VL}
    v_add_u32 v6, s30, v6
    v_cmp_gt_u32 vcc, 32, v{VL}
    s_nop 1
    v_cndmask_b32 v5, v6, v5, vcc
    v_lshlrev_b32 v5, 7, v5
    s_cmp_lg_u32 s{S_W}, 0
    s_cbranch_scc1 L_p3_polled
    """)
    poll(a, "L_p3_f2", 5, RE, 1, sleep=2)
    a.label("L_p3_polled")
    a("s_barrier")
    stamp(a, 9)
    a(f"""
    v_lshrrev_b32 v6, 1, v4
    v_and_b32 v7, 1, v4
    v_lshlrev_b32 v20, 10, v6
    v_lshl_add_u32 v20, v7, 9, v20
    v_lshl_add_u32 v17, v3, 4, v20
    v_lshlrev_b32 v20, 9, v4
    v_lshl_add_u32 v18, v3, 3, v20
    s_lshl_b32 s61, s60, 15
    s_lshl_b32 s29, s59, 14
    s_add_u32 s61, s61, s29
    s_lshl_b32 s62, s60, 13
    s_lshl_b32 s29, s59, 12
    s_add_u32 s62, s62, s29
    """)
    seq = [0, 1, 2, 3, 8, 4, 5, 6, 7, 9]
    nload = []
    for st in seq:
        n = 0
        for sub in range(2):
            dst = VB + 8 * st + 4 * sub
            if st < 8:
                a(f"s_add_u32 s29, s61, {st * 2048}")
                a(f"buffer_load_dwordx4 {vr(dst, 4)}, v17, {srd4(RB)}, s29 offen offset:{256 * sub} sc1")
                n += 1
            else:
                a(f"s_add_u32 s29, s62, {(st - 8) * 2048}")
                for sec in range(2):
                    a(f"buffer_load_dwordx2 {vr(dst + 2 * sec, 2)}, v18, {srd4(RC)}, s29 offen offset:{128 * sub + 256 * sec} sc1")
                    n += 1
        nload.append(n)
    a(f"v_lshlrev_b32 v22, 3, v21")
    a(f"buffer_load_dwordx2 {vr(VST, 2)}, v22, {srd4(RD)}, 0 offen sc1")
    a.srd(RE, P_WS, WS_IDX, 16)
    a(f"v_mov_b32 v5, 0\nbuffer_load_dwordx4 v[8:11], v5, {srd4(RE)}, 0 offen sc1")
    tail_loads = 2
    a(f"""
    v_bfe_u32 v12, v{VL}, 2, 2
    v_and_b32 v13, 3, v{VL}
    v_mul_u32_u24 v20, 20, v6
    v_lshl_add_u32 v20, v7, 2, v20
    v_add_u32 v20, v20, v12
    v_mul_u32_u24 v20, 160, v20
    v_lshl_add_u32 v14, v13, 3, v20
    s_mul_i32 s29, s59, {8 * 6400}
    v_add_u32 v14, s29, v14
    v_mul_u32_u24 v20, 40, v4
    v_add_u32 v20, 16, v20
    v_add_u32 v20, v20, v12
    v_mul_u32_u24 v20, 160, v20
    v_lshl_add_u32 v15, v13, 3, v20
    s_mul_i32 s29, s59, {2 * 25600}
    v_add_u32 v15, s29, v15
    """)
    for r in range(40):
        a(f"v_mov_b32 v{PACC + r}, 0")

    def a_reads(st, fset):
        for blk in range(5):
            for sec in range(2):
                dst = vr(FA + 20 * fset + 4 * blk + 2 * sec, 2)
                if st < 8:
                    a(f"ds_read_b64_tr_b16 {dst}, v14 offset:{st * 6400 + sec * 1280 + blk * 32}")
                else:
                    a(f"ds_read_b64_tr_b16 {dst}, v15 offset:{(st - 8) * 25600 + sec * 3200 + blk * 32}")
    a_reads(seq[0], 0)
    fset = 0
    for n, st in enumerate(seq):
        if n + 1 < len(seq):
            a_reads(seq[n + 1], fset ^ 1)
            a("s_waitcnt lgkmcnt(10)")
        else:
            a("s_waitcnt lgkmcnt(0)")
        a(f"s_waitcnt vmcnt({sum(nload[n + 1:]) + tail_loads})")
        for blk in range(5):
            for sub in range(2):
                acc = vr(PACC + 20 * sub + 4 * blk, 4)
                a(f"{MF16} {acc}, {vr(FA + 20 * fset + 4 * blk, 4)}, {vr(VB + 8 * st + 4 * sub, 4)}, {acc}")
        fset ^= 1
    stamp(a, 10)
    a(f"s_mov_b32 s{S_SPIN}, {SPIN_MAX}")
    a.label("L_p3_idx")
    a(f"""
    s_waitcnt vmcnt(0)
    v_readfirstlane_b32 s63, v8
    v_readfirstlane_b32 s29, v9
    v_readfirstlane_b32 s64, v10
    v_readfirstlane_b32 s30, v11
    s_xor_b32 s29, s29, s{S_NONCE}
    s_xor_b32 s30, s30, s{S_NONCE}
    s_or_b32 s29, s29, s30
    s_cmp_eq_u32 s29, 0
    s_cbranch_scc1 L_p3_idx_ok
    s_sleep 4
    buffer_load_dwordx4 v[8:11], v5, {srd4(RE)}, 0 offen sc1
    """)
    spin_back(a, "L_p3_idx")
    a("s_waitcnt vmcnt(0)")
    a.label("L_p3_idx_ok")
    for r in range(20):
        a(f"v_mov_b32 v{VY + r}, 0")
    a(f"""
    s_lshr_b32 s29, s63, 6
    s_lshr_b32 s30, s64, 6
    s_cmp_eq_u32 s29, s{S_T64}
    s_cbranch_scc1 L_p3_routed
    s_cmp_eq_u32 s30, s{S_T64}
    s_cbranch_scc0 L_p3_noy
    """)
    a.label("L_p3_routed")
    a.srd(RE, P_WS, WS_FY, FLAG_AREA)
    a(f"""
    s_mul_i32 s29, s{S_OC}, 80
    s_lshr_b32 s29, s29, 6
    v_min_u32 v5, 1, v{VL}
    v_add_u32 v5, s29, v5
    v_lshlrev_b32 v5, 7, v5
    """)
    poll(a, "L_p3_fy", 5, RE, 1, sleep=4)
    a.srd(RE, P_WS, WS_Y, 2 * D * 4)
    a(f"""
    v_lshlrev_b32 v23, 4, v4
    s_mul_i32 s29, s{S_OC}, 320
    v_add_u32 v23, s29, v23
    v_add_u32 v24, 2560, v23
    v_mov_b32 v25, {OOB}
    v_cmp_eq_u32 vcc, s63, v21
    v_cmp_eq_u32 s[30:31], s64, v21
    s_nop 0
    v_cndmask_b32 v25, v25, v23, vcc
    v_cndmask_b32 v25, v25, v24, s[30:31]
    """)
    for blk in range(5):
        a(f"buffer_load_dwordx4 {vr(VY + 4 * blk, 4)}, v25, {srd4(RE)}, 0 offen offset:{64 * blk} sc1")
    a("s_waitcnt vmcnt(0)")
    a.label("L_p3_noy")
    a(f"""
    s_mul_i32 s29, s{S_W}, 5120
    s_add_u32 s29, s29, {LDS_AUX}
    v_lshlrev_b32 v5, 4, v{VL}
    v_add_u32 v6, s29, v5
    s_xor_b32 s30, s{S_W}, 2
    s_mul_i32 s30, s30, 5120
    s_add_u32 s30, s30, {LDS_AUX}
    v_add_u32 v7, s30, v5
    s_cmp_eq_u32 s59, 0
    s_cbranch_scc0 L_p3_kh1
    """)
    for kh in range(2):
        if kh == 1:
            a.label("L_p3_kh1")
        send, keep = PACC + 20 * (1 - kh), PACC + 20 * kh
        a("s_nop 3")
        for g in range(5):
            a(f"ds_write_b128 v6, {vr(send + 4 * g, 4)} offset:{g * 1024}")
        a("s_waitcnt lgkmcnt(0)\ns_barrier")
        for g in range(5):
            a(f"ds_read_b128 {vr(FA + 4 * g, 4)}, v7 offset:{g * 1024}")
        a("s_waitcnt lgkmcnt(0)")
        for r in range(20):
            a(f"v_add_f32 v{FA + r}, v{FA + r}, v{keep + r}")
        if kh == 0:
            a("s_branch L_p3_red")
    a.label("L_p3_red")
    a.srd(RE, P_OUT, 0, S * D * 2)
    a(f"""
    v_add_f32 v26, 1.0, v{VST + 1}
    v_mul_f32 v27, v{VST}, v{VST + 1}
    """)
    for blk in range(5):
        acc, x, y = FA + 4 * blk, VX + 2 * blk, VY + 4 * blk
        a(f"""
        v_lshlrev_b32 v28, 16, v{x}
        v_and_b32 v29, 0xffff0000, v{x}
        v_lshlrev_b32 v30, 16, v{x + 1}
        v_and_b32 v31, 0xffff0000, v{x + 1}
        """)
        for r in range(4):
            a(f"v_add_f32 v{acc + r}, v{acc + r}, v{y + r}")
            a(f"v_fma_f32 v{28 + r}, v{28 + r}, v26, -v27")
            a(f"v_add_f32 v{acc + r}, v{acc + r}, v{28 + r}")
        a(f"v_cvt_pk_bf16_f32 v{acc}, v{acc}, v{acc + 1}\nv_cvt_pk_bf16_f32 v{acc + 1}, v{acc + 2}, v{acc + 3}")
        a(f"buffer_store_dwordx2 {vr(acc, 2)}, v19, {srd4(RE)}, 0 offen offset:{32 * blk}")


def gen_fused(a, name, stop_after=3):
    a.begin_kernel(name)
    a("s_cmp_ge_u32 s2, 256\ns_cbranch_scc1 L_end")
    stamp(a, 0)
    a(f"""
    s_load_dwordx4 s[4:7], s[0:1], {KA_X}
    s_load_dwordx2 s[8:9], s[0:1], {KA_WO}
    s_load_dwordx8 s[12:19], s[0:1], {KA_WR}
    s_load_dwordx4 s[20:23], s[0:1], {KA_OUT}
    s_load_dwordx2 s[24:25], s[0:1], {KA_WS}
    v_lshrrev_b32 v1, 6, v0
    v_and_b32 v{VL}, 63, v0
    v_readfirstlane_b32 s{S_W}, v1
    s_and_b32 s29, s2, 7
    s_lshr_b32 s30, s2, 3
    s_and_b32 s{S_TT}, s29, 1
    s_lshl_b32 s{S_TT}, s{S_TT}, 3
    s_and_b32 s{S_CT}, s30, 7
    s_add_u32 s{S_TT}, s{S_TT}, s{S_CT}
    s_lshr_b32 s{S_CT}, s29, 1
    s_lshl_b32 s{S_CT}, s{S_CT}, 2
    s_lshr_b32 s30, s30, 3
    s_add_u32 s{S_CT}, s{S_CT}, s30
    s_waitcnt lgkmcnt(0)
    s_cmp_ge_u32 s{S_W}, 4
    s_cbranch_scc1 L_helper
    """)
    a("s_or_b32 s29, s2, s3\ns_cmp_lg_u32 s29, 0\ns_cbranch_scc1 L_nononce")
    a.srd(RF, P_DBG, 0, 256)
    a(f"""
    s_memrealtime s[30:31]
    s_waitcnt lgkmcnt(0)
    s_or_b32 s30, s30, 1
    v_mov_b32 v10, 0
    v_mov_b32 v11, s30
    buffer_store_dword v11, v10, {srd4(RF)}, 0 offen sc1
    """)
    a.label("L_nononce")
    a(f"""
    v_mov_b32 v10, {LDS_DONE}
    v_mov_b32 v12, 0
    v_mov_b32 v13, 0
    ds_write_b64 v10, v[12:13]
    """)
    p1_produce(a)
    stamp(a, 1)
    a(f"s_cmp_ge_u32 s{S_CT}, 15\ns_cbranch_scc1 L_p1_idle")
    p1_addresses(a)
    for r in range(64):
        a(f"v_mov_b32 v{ACC + r}, 0")
    a("s_waitcnt lgkmcnt(0)\ns_barrier")
    stamp(a, 2)
    a(f"s_cmp_ge_u32 s{S_CT}, 10\ns_cbranch_scc1 L_p1_v")
    p1_main(a, False, "p1a")
    a("s_barrier")
    stamp(a, 5)
    p1_epilogue_qk(a)
    a("s_branch L_p1_stored")
    a.label("L_p1_v")
    p1_main(a, True, "p1v")
    a("s_barrier")
    stamp(a, 5)
    p1_epilogue_v(a)
    a.label("L_p1_stored")
    a(f"""
    s_waitcnt vmcnt(0)
    v_mov_b32 v10, {LDS_DONE}
    v_mov_b32 v11, 1
    s_mov_b64 exec, 1
    ds_add_rtn_u32 v12, v10, v11
    s_mov_b64 exec, -1
    s_waitcnt lgkmcnt(0)
    v_readfirstlane_b32 s29, v12
    """)
    stamp(a, 6)
    a("s_cmp_lg_u32 s29, 3\ns_cbranch_scc1 L_p1_done")
    a(f"s_lshl_b32 s56, s{S_CT}, 4\ns_add_u32 s56, s56, s{S_TT}")
    store_flag(a, WS_F1, 56)
    a("s_branch L_p1_done")
    a.label("L_p1_idle")
    p1_publish_stats(a, "L_idle_nonce")
    a("s_waitcnt vmcnt(0) lgkmcnt(0)\ns_barrier")
    a(f"s_cmp_lg_u32 s{S_W}, 0\ns_cbranch_scc1 L_p1_done")
    store_flag(a, WS_F0, 2)
    a.label("L_p1_done")
    if stop_after == 1:
        a("s_waitcnt vmcnt(0)")
        stamp_flush(a, 7, P_WS, S_W, 0)
        a("s_endpgm")
    k2.S_Q, k2.S_K, k2.S_V, k2.S_OM, k2.S_OT = RA, RB, RC, RD, RE
    k2.S_W, k2.S_HEAD, k2.S_QB, k2.S_KOFF, k2.S_CNT, k2.S_VOFF = S_W, 56, 57, 58, 59, 60
    k2.S_TT32, k2.S_PAR, k2.S_PB, k2.S_T0, k2.S_T1 = 61, 62, 63, 64, 65
    k2.LD["f"] = " sc1" if OPT["kv_sc1"] else ""
    k2.STAMPS[:] = [7, 8]
    a(f"v_mov_b32 v6, v{VL}")
    k2.attn_setup(a)
    a.srd(RF, P_WS, WS_F1, FLAG_AREA)
    a(f"""
    s_mul_i32 s29, s56, 20
    s_lshr_b32 s30, s29, 7
    s_add_u32 s29, s29, 19
    s_lshr_b32 s31, s29, 7
    v_lshrrev_b32 v8, 4, v{VL}
    v_and_b32 v9, 15, v{VL}
    v_and_b32 v10, 1, v8
    v_lshrrev_b32 v11, 1, v8
    v_mov_b32 v12, s30
    v_mov_b32 v13, s31
    v_cmp_eq_u32 vcc, 0, v10
    s_nop 1
    v_cndmask_b32 v12, v13, v12, vcc
    v_mul_u32_u24 v13, 5, v11
    v_add_u32 v13, v12, v13
    v_add_u32 v13, 5, v13
    v_lshl_add_u32 v13, v13, 4, v9
    v_lshlrev_b32 v13, 7, v13
    v_lshl_add_u32 v14, v12, 4, v9
    v_lshlrev_b32 v14, 7, v14
    s_cmp_lg_u32 s{S_W}, 0
    s_cbranch_scc1 L_p2_polled
    """)
    poll2(a, "L_p2_f1", 13, 14, RF, sleep=OPT["poll_sleep"])
    a(f"v_mov_b32 v10, {LDS_READY}\nv_mov_b32 v11, s{S_NONCE}\nds_write_b32 v10, v11\ns_waitcnt lgkmcnt(0)\ns_branch L_p2_go")
    a.label("L_p2_polled")
    a(f"v_mov_b32 v10, {LDS_READY}\ns_mov_b32 s{S_SPIN}, {SPIN_MAX * 8}")
    a.label("L_p2_wait")
    a(f"""
    ds_read_b32 v11, v10
    s_waitcnt lgkmcnt(0)
    v_readfirstlane_b32 s29, v11
    s_cmp_eq_u32 s29, s{S_NONCE}
    s_cbranch_scc1 L_p2_go
    s_sleep 1
    """)
    spin_back(a, "L_p2_wait")
    a.label("L_p2_go")
    stamp(a, 4)
    k2.attn_body(a, P_WS, "p2", lds_base=LDS_AUX, st_flag=" sc1", pre_barrier=True)
    a("s_waitcnt vmcnt(0)\ns_barrier")
    a(f"s_cmp_lg_u32 s{S_W}, 0\ns_cbranch_scc1 L_p2_flagged")
    a("s_lshl_b32 s66, s57, 5\ns_add_u32 s66, s66, s56")
    store_flag(a, WS_F2, 66)
    a.label("L_p2_flagged")
    if stop_after == 2:
        a("s_waitcnt vmcnt(0)")
        stamp_flush(a, 9, P_WS, S_W, 0)
        a("s_endpgm")
    p3_body(a)
    stamp(a, 11)
    a("s_waitcnt vmcnt(0)")
    stamp_flush(a, 12, P_WS, S_W, 0)
    a("s_endpgm")
    a.label("L_helper")
    stamp(a, 1)
    a(f"s_cmp_ge_u32 s{S_CT}, 15\ns_cbranch_scc1 L_h_idle")
    a(f"s_cmp_eq_u32 s{S_W}, 4\ns_cbranch_scc0 L_h_w")
    p1_loader(a, 0)
    a("s_branch L_h_bf")
    a.label("L_h_w")
    p1_loader(a, 1)
    a("s_branch L_h_moe")
    a.label("L_h_idle")
    a("s_barrier")
    nonce_from_lds(a)
    a(f"s_cmp_eq_u32 s{S_W}, 4\ns_cbranch_scc0 L_h_moe")
    a.label("L_h_bf")
    stamp(a, 2)
    if stop_after == 1:
        a("s_endpgm")
    wait_ready(a, "L_h_rdy4")
    wo_loader(a)
    a("s_waitcnt vmcnt(0)")
    stamp(a, 3)
    stamp_flush(a, 4, P_WS, S_W, 0)
    a("s_endpgm")
    a.label("L_h_moe")
    stamp(a, 2)
    if stop_after == 1 or not OPT["moe"]:
        a("s_endpgm")
    a("s_setprio 3")
    a("s_cmp_eq_u32 s2, 255\ns_cbranch_scc0 L_h_nosel")
    moe_select(a)
    a("s_waitcnt vmcnt(0)\ns_endpgm")
    a.label("L_h_nosel")
    a("s_cmp_ge_u32 s2, 250\ns_cbranch_scc1 L_end")
    wait_ready(a, "L_h_rdy5")
    stamp(a, 3)
    a("s_cmp_ge_u32 s2, 240\ns_cbranch_scc1 L_h_fin")
    moe_tasks(a)
    stamp(a, 4)
    stamp_flush(a, 5, P_WS, S_W, 0)
    a("s_waitcnt vmcnt(0)\ns_endpgm")
    a.label("L_h_fin")
    moe_finish(a)
    stamp(a, 4)
    stamp_flush(a, 5, P_WS, S_W, 0)
    a("s_waitcnt vmcnt(0)")
    a.label("L_end")
    a("s_endpgm")
```

```python
from common import *

VQ, VO, VS, VP, VKV = 8, 40, 104, 136, 152
V_LIN, V_KM, V_KT, V_V0, V_V1, V_OT = 1, 2, 3, 4, 5, 7
S_Q, S_K, S_OM, S_OT, S_V = 8, 12, 16, 20, 44
S_W, S_HEAD, S_QB, S_KOFF, S_CNT, S_VOFF = 24, 25, 26, 27, 28, 32
S_TT32, S_PAR, S_PB = 33, 34, 35
S_T0, S_T1 = 36, 37
OOB = 0x10000000
LDS_BYTES = 24576
MF = "v_mfma_f32_32x32x16_bf16"


def q_main(j): return vr(VQ + 8 * j, 4)
def q_tail(j): return vr(VQ + 8 * j + 4, 4)
def o_acc(j): return vr(VO + 16 * j, 16)
def s_buf(b): return VS + 16 * b
def p_buf(b): return VP + 8 * b
def k_main(st): return VKV + 16 * st
def k_tail(st): return VKV + 16 * st + 4
def v_0(st): return VKV + 16 * st + 8
def v_1(st): return VKV + 16 * st + 12


def exp_group(a, b, g):
    s, p = s_buf(b) + 4 * g, p_buf(b) + 2 * g
    for r in range(4):
        a(f"v_exp_f32 v{s + r}, v{s + r}")
    a(f"v_cvt_pk_bf16_f32 v{p}, v{s}, v{s + 1}")
    a(f"v_cvt_pk_bf16_f32 v{p + 1}, v{s + 2}, v{s + 3}")


def load_k(a, st, part):
    reg, off = (k_main(st), V_KM) if part == 0 else (k_tail(st), V_KT)
    a(f"buffer_load_dwordx4 {vr(reg, 4)}, v{off}, s[{S_K}:{S_K + 3}], s{S_KOFF} offen{LD['f']}")


def load_v(a, st, part):
    reg, off = (v_0(st), V_V0) if part == 0 else (v_1(st), V_V1)
    a(f"buffer_load_dwordx4 {vr(reg, 4)}, v{off}, s[{S_V}:{S_V + 3}], s{S_VOFF} offen{LD['f']}")


STAMPS = [1, 2]
LD = {"f": ""}


def phase(a, n, j, extra):
    cb = j & 1
    nb = cb ^ 1
    st_next = n % 4 if j < 3 else (n + 1) % 4
    jn = (j + 1) % 4
    st_prev = n % 4 if j > 0 else (n - 1) % 4
    jp = (j - 1) % 4
    sn = vr(s_buf(nb), 16)
    pp = p_buf(nb)

    def ex(slot):
        for f in extra.get(slot, ()):
            f()
    a(f"{MF} {sn}, {vr(k_main(st_next), 4)}, {q_main(jn)}, 0")
    ex(0)
    exp_group(a, cb, 0)
    a(f"{MF} {o_acc(jp)}, {vr(v_0(st_prev), 4)}, {vr(pp, 4)}, {o_acc(jp)}")
    ex(1)
    exp_group(a, cb, 1)
    a(f"{MF} {sn}, {vr(k_tail(st_next), 4)}, {q_tail(jn)}, {sn}")
    ex(2)
    exp_group(a, cb, 2)
    a(f"{MF} {o_acc(jp)}, {vr(v_1(st_prev), 4)}, {vr(pp + 4, 4)}, {o_acc(jp)}")
    ex(3)
    exp_group(a, cb, 3)


def tile(a, n, last_in_body):
    ld = (n + 3) % 4
    ex0 = {0: [lambda: load_k(a, ld, 0)], 2: [lambda: load_k(a, ld, 1)],
           3: [lambda: a(f"s_add_u32 s{S_KOFF}, s{S_KOFF}, 512")]}
    ex1 = {0: [lambda: load_v(a, ld, 0)], 2: [lambda: load_v(a, ld, 1)],
           3: [lambda: a(f"s_add_u32 s{S_VOFF}, s{S_VOFF}, {VT_BYTES}")]}
    ex2 = {3: [lambda: a("s_waitcnt vmcnt(8)")]}
    ex3 = {}
    if last_in_body:
        ex3 = {1: [lambda: a(f"s_sub_u32 s{S_CNT}, s{S_CNT}, 1")], 3: [lambda: a(f"s_cmp_lg_u32 s{S_CNT}, 0")]}
    phase(a, n, 0, ex0)
    phase(a, n, 1, ex1)
    phase(a, n, 2, ex2)
    phase(a, n, 3, ex3)


def exchange_and_store(a, wk, lds_base, st_flag, pre_barrier):
    keep = [0, 1] if wk == 0 else [2, 3]
    send = [2, 3] if wk == 0 else [0, 1]
    T = 216
    a(f"""
    s_mul_i32 s29, s{S_W}, 6144
    s_add_u32 s29, s29, {lds_base}
    v_add_u32 v0, s29, v{V_LIN}
    s_xor_b32 s30, s{S_W}, 2
    s_mul_i32 s30, s30, 6144
    s_add_u32 s30, s30, {lds_base}
    v_add_u32 v6, s30, v{V_LIN}
    """)
    if pre_barrier:
        a("s_barrier")
    for jj, j in enumerate(send):
        for g in range(3):
            a(f"ds_write_b128 v0, {vr(VO + 16 * j + 4 * g, 4)} offset:{(jj * 3 + g) * 1024}")
    a("s_waitcnt lgkmcnt(0)\ns_barrier")
    for jj, j in enumerate(keep):
        for g in range(3):
            a(f"ds_read_b128 {vr(T + 12 * jj + 4 * g, 4)}, v6 offset:{(jj * 3 + g) * 1024}")
    for jj, j in enumerate(keep):
        o = VO + 16 * j
        t = T + 12 * jj
        a(f"s_waitcnt lgkmcnt({3 * (1 - jj)})")
        for r in range(12):
            a(f"v_add_f32 v{o + r}, v{o + r}, v{t + r}")
        a(f"v_mov_b32 v{t}, v{o + 8}\nv_mov_b32 v{t + 1}, v{o + 8}\ns_nop 1")
        a(f"v_permlane32_swap_b32 v{t}, v{t + 1}")
        a("s_nop 1")
        a(f"v_rcp_f32 v{t + 2}, v{t + 1}")
        a("s_nop 0")
        for r in range(12):
            a(f"v_mul_f32 v{o + r}, v{o + r}, v{t + 2}")
        for r in range(6):
            a(f"v_cvt_pk_bf16_f32 v{t + 4 + r}, v{o + 2 * r}, v{o + 2 * r + 1}")
        a(f"""
        s_add_u32 s31, s{S_TT32}, {j}
        s_lshl_b32 s31, s31, 5
        s_add_u32 s31, s31, s{S_HEAD}
        s_lshl_b32 s{S_T0}, s31, 10
        s_lshl_b32 s{S_T1}, s31, 8
        """)
        a(f"buffer_store_dwordx4 {vr(t + 4, 4)}, v{V_LIN}, s[{S_OM}:{S_OM + 3}], s{S_T0} offen{st_flag}")
        a(f"buffer_store_dwordx2 {vr(t + 8, 2)}, v{V_OT}, s[{S_OT}:{S_OT + 3}], s{S_T1} offen{st_flag}")


def attn_setup(a):
    a(f"""
    s_and_b32 s29, s2, 7
    s_lshr_b32 s30, s2, 3
    s_and_b32 s{S_QB}, s30, 7
    s_lshr_b32 s30, s30, 3
    s_lshl_b32 s29, s29, 2
    s_add_u32 s{S_HEAD}, s29, s30
    v_lshlrev_b32 v{V_LIN}, 4, v6
    v_and_b32 v7, 31, v6
    v_lshrrev_b32 v0, 5, v6
    s_and_b32 s{S_PAR}, s{S_HEAD}, 1
    s_mul_i32 s{S_PB}, s{S_HEAD}, 5
    s_lshr_b32 s{S_PB}, s{S_PB}, 1
    v_add_u32 v{V_KM}, s{S_PAR}, v0
    v_lshlrev_b32 v{V_KM}, 15, v{V_KM}
    v_lshl_add_u32 v{V_KM}, v7, 4, v{V_KM}
    s_xor_b32 s29, s{S_PAR}, 1
    s_lshl_b32 s29, s29, 16
    v_lshlrev_b32 v{V_KT}, 4, v7
    v_add_u32 v{V_KT}, s29, v{V_KT}
    s_mul_i32 s29, s{S_HEAD}, 20
    v_add_u32 v{V_V0}, s29, v7
    v_mov_b32 v8, 640
    v_cmp_eq_u32 vcc, 20, v7
    v_mov_b32 v9, {OOB}
    v_cmp_eq_u32 s[30:31], 0, v0
    v_cndmask_b32 v{V_V0}, v{V_V0}, v8, vcc
    v_lshlrev_b32 v{V_V0}, 5, v{V_V0}
    v_lshl_add_u32 v{V_V0}, v0, 4, v{V_V0}
    v_cndmask_b32 v{V_KT}, v9, v{V_KT}, s[30:31]
    v_cmp_gt_u32 vcc, 21, v7
    v_lshlrev_b32 v7, 3, v7
    v_cndmask_b32 v{V_OT}, v9, v7, s[30:31]
    v_cndmask_b32 v{V_V0}, v9, v{V_V0}, vcc
    v_add_u32 v{V_V1}, {VJ_BYTES}, v{V_V0}
    s_and_b32 s29, s{S_W}, 1
    s_lshl_b32 s29, s29, 2
    s_lshl_b32 s{S_TT32}, s{S_QB}, 3
    s_add_u32 s{S_TT32}, s{S_TT32}, s29
    s_lshl_b32 s{S_PB}, s{S_PB}, 15
    """)


def attn_body(a, ws, pfx, lds_base=0, st_flag="", pre_barrier=False):
    a.srd(S_K, ws, WS_KP, QP_BYTES)
    a.srd(S_V, ws, WS_VI, VI_BYTES)
    a.srd(S_Q, ws, WS_QP, QP_BYTES)
    a(f"""
    s_lshl_b32 s30, s{S_TT32}, 9
    s_add_u32 s30, s30, s{S_PB}
    s_lshr_b32 s29, s{S_W}, 1
    s_lshl_b32 s{S_KOFF}, s29, 14
    s_add_u32 s{S_KOFF}, s{S_KOFF}, s{S_PB}
    s_mul_i32 s{S_VOFF}, s29, {32 * VT_BYTES}
    """)
    for part in range(2):
        load_k(a, 0, part)
    for j in range(4):
        a(f"buffer_load_dwordx4 {q_main(j)}, v{V_KM}, s[{S_Q}:{S_Q + 3}], s30 offen{LD['f']}")
        a(f"buffer_load_dwordx4 {q_tail(j)}, v{V_KT}, s[{S_Q}:{S_Q + 3}], s30 offen{LD['f']}")
        a("s_add_u32 s30, s30, 512")
    for part in range(2):
        load_v(a, 0, part)
    a(f"s_add_u32 s{S_KOFF}, s{S_KOFF}, 512\ns_add_u32 s{S_VOFF}, s{S_VOFF}, {VT_BYTES}")
    for st in (1, 2):
        for part in range(2):
            load_k(a, st, part)
        for part in range(2):
            load_v(a, st, part)
        a(f"s_add_u32 s{S_KOFF}, s{S_KOFF}, 512\ns_add_u32 s{S_VOFF}, s{S_VOFF}, {VT_BYTES}")
    a.srd(S_OM, ws, WS_OM, OM_BYTES)
    a.srd(S_OT, ws, WS_OT, OT_BYTES)
    for r in range(64):
        a(f"v_mov_b32 v{VO + r}, 0")
    for r in range(8):
        a(f"v_mov_b32 v{p_buf(1) + r}, 0")
        a(f"v_mov_b32 v{v_0(3) + r}, 0")
    a(f"s_mov_b32 s{S_CNT}, 8")
    a("s_waitcnt vmcnt(10)")
    a(f"s_cmp_eq_u32 s{S_PAR}, 0\ns_cbranch_scc0 L_{pfx}_odd")
    for j in range(4):
        a(f"v_mov_b32 v{VQ + 8 * j + 6}, 0\nv_mov_b32 v{VQ + 8 * j + 7}, 0")
    a(f"s_branch L_{pfx}_masked")
    a.label(f"L_{pfx}_odd")
    for j in range(4):
        a(f"v_mov_b32 v{VQ + 8 * j + 4}, 0\nv_mov_b32 v{VQ + 8 * j + 5}, 0")
    a.label(f"L_{pfx}_masked")
    a("s_nop 1")
    a(f"{MF} {vr(s_buf(0), 16)}, {vr(k_main(0), 4)}, {q_main(0)}, 0")
    a(f"{MF} {vr(s_buf(0), 16)}, {vr(k_tail(0), 4)}, {q_tail(0)}, {vr(s_buf(0), 16)}")
    a("s_waitcnt vmcnt(8)")
    a("s_nop 7\ns_nop 3")
    stamp(a, STAMPS[0])
    if DIAG["on"]:
        a("s_waitcnt lgkmcnt(0)")
    a.raw(".p2align 3")
    a.label(f"L_{pfx}_loop")
    for n in range(4):
        tile(a, n, n == 3)
    a(f"s_cbranch_scc1 L_{pfx}_loop")
    stamp(a, STAMPS[1])
    a(f"{MF} {o_acc(3)}, {vr(v_0(3), 4)}, {vr(p_buf(1), 4)}, {o_acc(3)}")
    a(f"{MF} {o_acc(3)}, {vr(v_1(3), 4)}, {vr(p_buf(1) + 4, 4)}, {o_acc(3)}")
    a("s_nop 7\ns_nop 3")
    a(f"s_cmp_ge_u32 s{S_W}, 2\ns_cbranch_scc1 L_{pfx}_wk1")
    exchange_and_store(a, 0, lds_base, st_flag, pre_barrier)
    a(f"s_branch L_{pfx}_stored")
    a.label(f"L_{pfx}_wk1")
    exchange_and_store(a, 1, lds_base, st_flag, pre_barrier)
    a.label(f"L_{pfx}_stored")


def gen_k2(a, name="attn_kernel"):
    a.begin_kernel(name)
    a(f"""
    s_cmp_ge_u32 s2, 256
    s_cbranch_scc1 L_k2_end
    """)
    stamp(a, 0)
    a(f"""
    s_load_dwordx2 s[4:5], s[0:1], {KA_WS}
    v_lshrrev_b32 v5, 6, v0
    v_and_b32 v6, 63, v0
    v_readfirstlane_b32 s{S_W}, v5
    """)
    attn_setup(a)
    a("s_waitcnt lgkmcnt(0)")
    attn_body(a, 4, "k2")
    stamp(a, 3)
    a("s_waitcnt vmcnt(0)")
    stamp(a, 4)
    stamp_flush(a, 5, 4, S_W, 2)
    a.label("L_k2_end")
    a("s_endpgm")
```

```python
import sys
from common import *
import fused, lint

def build(stop_after=3, listform=False):
    a = Asm()
    a.raw(HEADER.rstrip("\n"))
    name = NAME + "_kernel"
    if listform:
        a.raw(f"; @launch kernel={name} grid=(256,1,1) block=(384,1,1) lds={fused.LDS_BYTES}")
    else:
        a.raw(f"; @launch grid=(256,1,1) block=(384,1,1) lds={fused.LDS_BYTES}")
    a.raw('.amdgcn_target "amdgcn-amd-amdhsa--gfx950"')
    fused.gen_fused(a, name, stop_after)
    a.descriptor(name, 256)
    text = a.text()
    errs = lint.lint(text, [name])
    for e in errs:
        print(e)
    print(f"lint: {len(errs)} problems", file=sys.stderr)
    return text

if __name__ == "__main__":
    open("f1.s", "w").write(build(1, True))
    open("f2.s", "w").write(build(2, True))
    open("f3.s", "w").write(build(3, True))
    open("fused.s", "w").write(build(3, False))
    DIAG["on"] = True
    open("f3_st.s", "w").write(build(3, True))
```

```python
NAME = "parallel_sum__mha_block__moe_arch_mod__prompt"

S, D, H, DH, F = 2048, 640, 32, 20, 1536

KA_X, KA_WQKV, KA_WO, KA_BX, KA_WR, KA_WG, KA_WU, KA_WD, KA_OUT, KA_DBG, KA_WS = [8 * i for i in range(11)]

PAIR_BYTES = S * 16
QP_BYTES = 80 * PAIR_BYTES
VJ_BYTES = 161 * 128
VT_BYTES = 2 * VJ_BYTES
VI_BYTES = 64 * VT_BYTES
WS_QP = 0
WS_KP = WS_QP + QP_BYTES
WS_VI = WS_KP + QP_BYTES
WS_OM = (WS_VI + VI_BYTES + 255) // 256 * 256
OM_BYTES = 64 * H * 1024
WS_OT = WS_OM + OM_BYTES
OT_BYTES = 64 * H * 256
WS_STAT = WS_OT + OT_BYTES
WS_R = WS_STAT + S * 8
WS_KEY = WS_R + S * 4
WS_CSP = WS_KEY + S * 4
CSP_BYTES = 16 * 16 * 1024
WS_CAND = WS_CSP + CSP_BYTES
WS_HID = WS_CAND + 256
WS_Y = WS_HID + 8192
WS_IDX = WS_Y + 8192
WS_STATG = WS_IDX + 256
FLAG_AREA = 256 * 128
WS_F0 = (WS_STATG + S * 16 + 127) // 128 * 128
WS_F1 = WS_F0 + FLAG_AREA
WS_F2 = WS_F1 + FLAG_AREA
WS_FG = WS_F2 + FLAG_AREA
WS_FD = WS_FG + FLAG_AREA
WS_FY = WS_FD + FLAG_AREA
WS_PG = WS_FY + FLAG_AREA
WS_PY = WS_PG + 240 * 1024
WS_END = WS_PY + 240 * 512

QSCALE = (DH ** -0.5) * 1.4426950408889634


def f32bits(x):
    import struct
    return struct.unpack("<I", struct.pack("<f", x))[0]


def vr(a, n=1):
    return f"v{a}" if n == 1 else f"v[{a}:{a + n - 1}]"


def sr(a, n=1):
    return f"s{a}" if n == 1 else f"s[{a}:{a + n - 1}]"


class Asm:
    def __init__(self):
        self.lines = []

    def __call__(self, text):
        for ln in text.strip("\n").split("\n"):
            ln = ln.strip()
            if not ln:
                continue
            if ln.endswith(":"):
                self.lines.append(ln)
            else:
                self.lines.append("    " + ln)

    def label(self, name):
        self.lines.append(name + ":")

    def raw(self, text):
        self.lines.append(text)

    def text(self):
        return "\n".join(self.lines) + "\n"

    def begin_kernel(self, name):
        self.raw(".text")
        self.raw(f".globl {name}")
        self.raw(".p2align 8")
        self.raw(f".type {name},@function")
        self.raw(f"{name}:")

    def descriptor(self, name, vgpr, sgpr=102, accum=None):
        accum = accum if accum is not None else (vgpr + 3) // 4 * 4
        self.raw('.section .rodata,"a"')
        self.raw(".p2align 6")
        self.raw(f".amdhsa_kernel {name}")
        self.raw(f"  .amdhsa_next_free_vgpr {vgpr}")
        self.raw(f"  .amdhsa_next_free_sgpr {sgpr}")
        self.raw(f"  .amdhsa_accum_offset {accum}")
        self.raw("  .amdhsa_group_segment_fixed_size 0")
        self.raw("  .amdhsa_kernarg_size 88")
        self.raw("  .amdhsa_user_sgpr_count 2")
        self.raw("  .amdhsa_user_sgpr_kernarg_segment_ptr 1")
        self.raw("  .amdhsa_system_sgpr_workgroup_id_x 1")
        self.raw("  .amdhsa_float_denorm_mode_32 3")
        self.raw(".end_amdhsa_kernel")

    def srd(self, s, ptr, off, size):
        if isinstance(off, int) and off == 0:
            self(f"s_mov_b32 s{s}, s{ptr}\ns_mov_b32 s{s + 1}, s{ptr + 1}")
        else:
            o = off if isinstance(off, str) else hex(off)
            self(f"s_add_u32 s{s}, s{ptr}, {o}\ns_addc_u32 s{s + 1}, s{ptr + 1}, 0")
        self(f"s_mov_b32 s{s + 2}, {hex(size)}\ns_mov_b32 s{s + 3}, 0x00020000")


HEADER = """; Kernarg layout for this problem (88 bytes, ptrs only, base s[0:1]):
"""


DIAG = {"on": False, "real": False}
STAMP_WS = 48 << 20
STAMP_S0 = 78


def stamp(a, i):
    if DIAG["on"]:
        op = "s_memrealtime" if DIAG["real"] or DIAG.get("abs") else "s_memtime"
        a(f"{op} s[{STAMP_S0 + 2 * i}:{STAMP_S0 + 2 * i + 1}]")
        if DIAG["real"] or DIAG.get("abs"):
            a("s_waitcnt lgkmcnt(0)")


def stamp_flush(a, n, s_ws, s_wave, kidx):
    if not DIAG["on"]:
        return
    if DIAG["real"]:
        lab = f"L_dbgflush_{len(a.lines)}"
        a(f"s_waitcnt lgkmcnt(0) vmcnt(0)\ns_cmp_lg_u32 s2, {DIAG.get('wg', 0)}\ns_cbranch_scc1 {lab}\ns_cmp_lg_u32 s{s_wave}, 0\ns_cbranch_scc1 {lab}")
        a("s_mov_b32 s72, s22\ns_mov_b32 s73, s23\ns_mov_b32 s74, 256\ns_mov_b32 s75, 0x00020000\nv_mov_b32 v1, 0")
        for i in range(1, n):
            a(f"s_sub_u32 s76, s{STAMP_S0 + 2 * i}, s{STAMP_S0}\nv_mov_b32 v0, s76\nbuffer_store_dword v0, v1, s[72:75], 0 offen offset:{4 * i}\ns_nop 0")
        a("s_waitcnt vmcnt(0)")
        a.label(lab)
        return
    a("s_waitcnt lgkmcnt(0) vmcnt(0)")
    a(f"s_add_u32 s72, s{s_ws}, {STAMP_WS + kidx * 262144}\ns_addc_u32 s73, s{s_ws + 1}, 0\ns_mov_b32 s74, 262144\ns_mov_b32 s75, 0x00020000")
    a(f"s_lshl_b32 s76, s2, 3\ns_add_u32 s76, s76, s{s_wave}\ns_lshl_b32 s76, s76, 7\nv_mov_b32 v1, s76")
    for i in range(n):
        a(f"v_mov_b32 v0, s{STAMP_S0 + 2 * i}\nbuffer_store_dword v0, v1, s[72:75], 0 offen offset:{4 * i}\ns_nop 0")
    a("s_waitcnt vmcnt(0)")
```

```python
from common import *
import k2

MF32 = "v_mfma_f32_32x32x16_bf16"
MF16 = "v_mfma_f32_16x16x32_bf16"
ONES = 0x3f803f80
LOG2E = 1.4426950408889634
OOB = 0x10000000

S_W = 3
P_X, P_WQKV, P_WO, P_WR, P_WG, P_WU, P_WD, P_OUT, P_DBG, P_WS = 4, 6, 8, 12, 14, 16, 18, 20, 22, 24
S_NONCE, S_TT, S_CT = 26, 27, 28
RA, RB, RC, RD, RE, RF = 32, 36, 40, 44, 48, 52
S_SPIN, SPIN_MAX = 67, 200000
VL = 255

SLOT = 32768
LDS_CS = 161792
LDS_RS = LDS_CS + 512
LDS_NONCE = LDS_RS + 1024
LDS_DONE = LDS_NONCE + 4
LDS_READY = LDS_NONCE + 8
WO_BYTES = 640 * 160
LDS_XCH = WO_BYTES
LDS_AUX = 4 * SLOT
LDS_BYTES = 163840

CH_A = [0, 2, 1, 3, 4, 6, 5, 7]
OPT = {"p1st": "sc1", "wo_wait": True, "wo_delay": 5, "moe_wait": False, "moe": True, "kv_sc1": True, "helpers": True, "poll_sleep": 2, "wo_inflight": 5}


def srd4(r):
    return f"s[{r}:{r + 3}]"


def poll(a, label, vaddr, srd, n_dw, exec_lanes=None, sleep=4):
    a(f"s_mov_b32 s{S_SPIN}, {SPIN_MAX}")
    a.label(label)
    if n_dw == 1:
        a(f"buffer_load_dword v10, v{vaddr}, {srd4(srd)}, 0 offen sc1")
    else:
        a(f"buffer_load_dwordx{n_dw} {vr(10, n_dw)}, v{vaddr}, {srd4(srd)}, 0 offen sc1")
    a("s_waitcnt vmcnt(0)")
    a(f"v_cmp_ne_u32 vcc, s{S_NONCE}, v10")
    for i in range(1, n_dw):
        a(f"v_cmp_ne_u32 s[30:31], s{S_NONCE}, v{10 + i}\ns_or_b64 vcc, vcc, s[30:31]")
    a(f"s_cbranch_vccz {label}_ok\ns_sleep {sleep}")
    spin_back(a, label)
    a.label(label + "_ok")


def poll2(a, label, va, vb, srd, sleep=4):
    a(f"s_mov_b32 s{S_SPIN}, {SPIN_MAX}")
    a.label(label)
    a(f"buffer_load_dword v10, v{va}, {srd4(srd)}, 0 offen sc1")
    a(f"buffer_load_dword v11, v{vb}, {srd4(srd)}, 0 offen sc1")
    a("s_waitcnt vmcnt(0)")
    a(f"v_cmp_ne_u32 vcc, s{S_NONCE}, v10\nv_cmp_ne_u32 s[30:31], s{S_NONCE}, v11\ns_or_b64 vcc, vcc, s[30:31]")
    a(f"s_cbranch_vccz {label}_ok\ns_sleep {sleep}")
    spin_back(a, label)
    a.label(label + "_ok")


def spin_back(a, label):
    a(f"s_sub_u32 s{S_SPIN}, s{S_SPIN}, 1\ns_cmp_lg_u32 s{S_SPIN}, 0\ns_cbranch_scc1 {label}")


def get_nonce(a, label, t=10):
    a(f"v_mov_b32 v{t}, 0\ns_mov_b32 s{S_SPIN}, {SPIN_MAX}")
    a.label(label)
    a(f"buffer_load_dword v{t + 1}, v{t}, {srd4(RF)}, 0 offen sc1")
    a("s_waitcnt vmcnt(0)")
    a(f"v_readfirstlane_b32 s{S_NONCE}, v{t + 1}")
    a(f"s_cmp_lg_u32 s{S_NONCE}, 0\ns_cbranch_scc1 {label}_ok\ns_sleep 2")
    spin_back(a, label)
    a.label(label + "_ok")


def store_flag(a, ws_off, s_index, vtmp=10):
    a.srd(RF, P_WS, ws_off, FLAG_AREA)
    a(f"""
    s_lshl_b32 s29, s{s_index}, 7
    v_mov_b32 v{vtmp}, s29
    v_mov_b32 v{vtmp + 1}, s{S_NONCE}
    s_mov_b64 s[30:31], exec
    s_mov_b64 exec, 1
    buffer_store_dword v{vtmp + 1}, v{vtmp}, {srd4(RF)}, 0 offen sc1
    s_mov_b64 exec, s[30:31]
    """)


ACC, FR, CSR = 64, 32, 128
PR = 160
V_XA, V_XB, V_WA, V_WB = 8, 12, 16, 18


def half_wave_sum(a, regs):
    for ctl in ("row_shr:1", "row_shr:2", "row_shr:4", "row_shr:8"):
        for r in regs:
            a(f"v_add_f32_dpp v{r}, v{r}, v{r} {ctl} row_mask:0xf bank_mask:0xf")
    for r in regs:
        a(f"v_add_f32_dpp v{r}, v{r}, v{r} row_bcast:15 row_mask:0xa bank_mask:0xf")


PX, PWR, PWC = 190, 200, 210
LDS_CST = 157696


def p1_produce_loads(a):
    a.srd(RA, P_X, 0, S * D * 2)
    a.srd(RB, P_WR, 0, D * 2)
    a.srd(RC, P_WQKV, 0, D * 3 * D * 2)
    a.srd(RF, P_DBG, 0, 256)
    a(f"""
    v_and_b32 v3, 31, v{VL}
    v_lshrrev_b32 v4, 5, v{VL}
    s_lshl_b32 s29, s2, 3
    s_lshl_b32 s30, s{S_W}, 1
    s_add_u32 s29, s29, s30
    v_add_u32 v{PR + 4}, s29, v4
    v_mul_u32_u24 v6, 1280, v{PR + 4}
    v_lshlrev_b32 v7, 4, v3
    v_lshlrev_b32 v8, 3, v3
    v_add_u32 v8, 1024, v8
    v_add_u32 v9, v6, v7
    v_add_u32 v10, v6, v8
    buffer_load_dwordx4 v[{PX}:{PX + 3}], v9, {srd4(RA)}, 0 offen
    buffer_load_dwordx4 v[{PX + 4}:{PX + 7}], v9, {srd4(RA)}, 0 offen offset:512
    buffer_load_dwordx2 v[{PX + 8}:{PX + 9}], v10, {srd4(RA)}, 0 offen
    buffer_load_dwordx4 v[{PWR}:{PWR + 3}], v7, {srd4(RB)}, 0 offen
    buffer_load_dwordx4 v[{PWR + 4}:{PWR + 7}], v7, {srd4(RB)}, 0 offen offset:512
    buffer_load_dwordx2 v[{PWR + 8}:{PWR + 9}], v8, {srd4(RB)}, 0 offen
    v_lshlrev_b32 v9, 2, v{VL}
    s_mul_i32 s29, s{S_TT}, 40
    s_mul_i32 s30, s{S_W}, 10
    s_add_u32 s29, s29, s30
    s_mul_i32 s29, s29, 3840
    s_min_u32 s30, s{S_CT}, 14
    s_lshl_b32 s30, s30, 8
    s_add_u32 s29, s29, s30
    """)
    for i in range(10):
        a(f"buffer_load_dword v{PWC + i}, v9, {srd4(RC)}, s29 offen")
        if i < 9:
            a("s_add_u32 s29, s29, 3840")


def p1_produce_stats(a):
    T = 220
    a(f"""
    v_mov_b32 v{T}, 0
    v_mov_b32 v{T + 1}, 0
    v_mov_b32 v{T + 2}, 0
    v_mov_b32 v{T + 3}, 0
    s_mov_b32 s30, {ONES}
    s_waitcnt vmcnt(10)
    """)
    for i in range(10):
        a(f"v_dot2_f32_bf16 v{T}, v{PX + i}, s30, v{T}")
        a(f"v_dot2_f32_bf16 v{T + 1}, v{PX + i}, v{PX + i}, v{T + 1}")
        a(f"v_dot2_f32_bf16 v{T + 2}, v{PX + i}, v{PWR + i}, v{T + 2}")
        a(f"v_dot2_f32_bf16 v{T + 3}, v{PWR + i}, s30, v{T + 3}")
    a("s_nop 3")
    half_wave_sum(a, [T, T + 1, T + 2, T + 3])
    a(f"""
    s_mov_b32 s30, {hex(f32bits(1.0 / 640))}
    v_mul_f32 v{PR}, s30, v{T}
    v_mul_f32 v{T + 1}, s30, v{T + 1}
    v_fma_f32 v{T + 1}, -v{PR}, v{PR}, v{T + 1}
    v_max_f32 v{T + 1}, 0, v{T + 1}
    v_add_f32 v{T + 1}, {hex(f32bits(1e-5))}, v{T + 1}
    v_rsq_f32 v{PR + 1}, v{T + 1}
    v_fma_f32 v{T + 2}, -v{PR}, v{T + 3}, v{T + 2}
    s_nop 0
    v_mul_f32 v{PR + 2}, v{T + 2}, v{PR + 1}
    v_ashrrev_i32 v{T}, 31, v{PR + 2}
    v_or_b32 v{T}, 0x80000000, v{T}
    v_xor_b32 v{T}, v{T}, v{PR + 2}
    v_and_b32 v{T}, 0xfffff800, v{T}
    v_or_b32 v{PR + 3}, v{T}, v{PR + 4}
    """)


def p1_produce_cs(a):
    T = 220
    a(f"""
    v_mov_b32 v{T}, 0
    v_mov_b32 v{T + 1}, 0
    s_mov_b32 s30, 0x00003f80
    s_mov_b32 s31, 0x3f800000
    s_waitcnt vmcnt(0)
    """)
    for i in range(10):
        a(f"v_dot2_f32_bf16 v{T}, v{PWC + i}, s30, v{T}")
        a(f"v_dot2_f32_bf16 v{T + 1}, v{PWC + i}, s31, v{T + 1}")
    a(f"""
    s_lshl_b32 s29, s{S_W}, 9
    s_add_u32 s29, s29, {LDS_CST}
    v_lshlrev_b32 v{T + 2}, 3, v{VL}
    v_add_u32 v{T + 2}, s29, v{T + 2}
    s_nop 1
    ds_write_b64 v{T + 2}, v[{T}:{T + 1}]
    """)


def p1_publish_stats(a, label):
    T = 170
    get_nonce(a, label, T)
    a(f"v_mov_b32 v{T}, {LDS_NONCE}\nv_mov_b32 v{T + 1}, s{S_NONCE}\nds_write_b32 v{T}, v{T + 1}")
    a.srd(RA, P_WS, WS_STAT, WS_CSP - WS_STAT)
    a.srd(RB, P_WS, WS_STATG, S * 16)
    a(f"""
    v_mov_b32 v{T + 2}, v{PR}
    v_mov_b32 v{T + 3}, s{S_NONCE}
    v_mov_b32 v{T + 4}, v{PR + 1}
    v_mov_b32 v{T + 5}, s{S_NONCE}
    v_lshlrev_b32 v{T + 6}, 3, v{PR + 4}
    v_lshlrev_b32 v{T + 7}, 2, v{PR + 4}
    v_lshlrev_b32 v{T + 8}, 4, v{PR + 4}
    s_mov_b32 s29, {WS_R - WS_STAT}
    s_mov_b32 s30, {WS_KEY - WS_STAT}
    v_and_b32 v{T + 9}, 31, v{VL}
    v_cmp_eq_u32 vcc, 31, v{T + 9}
    s_and_saveexec_b64 s[56:57], vcc
    buffer_store_dwordx4 v[{T + 2}:{T + 5}], v{T + 8}, {srd4(RB)}, 0 offen sc1
    buffer_store_dwordx2 v[{PR}:{PR + 1}], v{T + 6}, {srd4(RA)}, 0 offen sc1
    buffer_store_dword v{PR + 2}, v{T + 7}, {srd4(RA)}, s29 offen sc1
    buffer_store_dword v{PR + 3}, v{T + 7}, {srd4(RA)}, s30 offen sc1
    s_mov_b64 exec, s[56:57]
    """)


def p1_publish_cs(a):
    T = 184
    a(f"""
    v_lshlrev_b32 v{T + 8}, 3, v{VL}
    v_add_u32 v{T + 9}, {LDS_CST}, v{T + 8}
    ds_read_b64 v[{T}:{T + 1}], v{T + 9}
    ds_read_b64 v[{T + 2}:{T + 3}], v{T + 9} offset:512
    ds_read_b64 v[{T + 4}:{T + 5}], v{T + 9} offset:1024
    ds_read_b64 v[{T + 6}:{T + 7}], v{T + 9} offset:1536
    """)
    a.srd(RA, P_WS, WS_CSP, CSP_BYTES)
    a(f"""
    s_lshl_b32 s29, s{S_CT}, 4
    s_add_u32 s29, s29, s{S_TT}
    s_lshl_b32 s29, s29, 10
    v_lshlrev_b32 v{T + 8}, 4, v{VL}
    s_waitcnt lgkmcnt(0)
    v_add_f32 v{T}, v{T}, v{T + 2}
    v_add_f32 v{T + 1}, v{T + 1}, v{T + 3}
    v_add_f32 v{T + 4}, v{T + 4}, v{T + 6}
    v_add_f32 v{T + 5}, v{T + 5}, v{T + 7}
    v_add_f32 v{T}, v{T}, v{T + 4}
    v_add_f32 v{T + 2}, v{T + 1}, v{T + 5}
    v_mov_b32 v{T + 1}, s{S_NONCE}
    v_mov_b32 v{T + 3}, s{S_NONCE}
    buffer_store_dwordx4 v[{T}:{T + 3}], v{T + 8}, {srd4(RA)}, s29 offen sc1
    """)


def p1_reads(a, stage, ks, fset):
    slot = stage % 4
    base = (slot & 1) * SLOT
    xa = (V_XB if slot >= 2 else V_XA) + ks
    wa = V_WB if slot >= 2 else V_WA
    f = FR + 16 * fset
    a(f"ds_read_b128 {vr(f, 4)}, v{xa} offset:{base}")
    a(f"ds_read_b128 {vr(f + 4, 4)}, v{xa} offset:{base + 4096}")
    for b in range(2):
        for jp in range(2):
            a(f"ds_read_b64_tr_b16 {vr(f + 8 + 4 * b + 2 * jp, 2)}, v{wa + b} offset:{base + ks * 4096 + jp * 1024}")


def p1_mfmas(a, fset, vmode):
    f = FR + 16 * fset
    for T in range(2):
        for B in range(2):
            acc = vr(ACC + 32 * T + 16 * B, 16)
            wf, xf = vr(f + 8 + 4 * B, 4), vr(f + 4 * T, 4)
            a(f"{MF32} {acc}, {xf}, {wf}, {acc}" if vmode else f"{MF32} {acc}, {wf}, {xf}, {acc}")


def p1_main(a, vmode, pfx):
    p1_reads(a, 0, 0, 0)
    for st in range(10):
        for ks in range(4):
            cur, nxt = ks & 1, (ks + 1) & 1
            if ks < 3:
                p1_reads(a, st, ks + 1, nxt)
                a("s_waitcnt lgkmcnt(6)")
            elif st < 9:
                if st == 2:
                    a("s_waitcnt vmcnt(0)")
                a("s_barrier")
                if st == 2:
                    a(f"s_cmp_lg_u32 s{S_W}, 0\ns_cbranch_scc1 L_{pfx}_nof0")
                    store_flag(a, WS_F0, 2, 28)
                    a.label(f"L_{pfx}_nof0")
                p1_reads(a, st + 1, 0, nxt)
                a("s_waitcnt lgkmcnt(6)")
            else:
                a("s_waitcnt lgkmcnt(0)")
            p1_mfmas(a, cur, vmode)
            if st == 0 and ks == 1:
                p1_produce_stats(a)
            if st == 0 and ks == 2:
                p1_produce_cs(a)
                a("s_waitcnt lgkmcnt(0)")
            if st == 1 and ks == 0:
                p1_publish_stats(a, f"L_{pfx}_nonce")
                a(f"s_cmp_lg_u32 s{S_W}, 0\ns_cbranch_scc1 L_{pfx}_nocs")
                p1_publish_cs(a)
                a.label(f"L_{pfx}_nocs")
                a("s_waitcnt lgkmcnt(0)")
        pass


def p1_addresses(a):
    a(f"""
    v_and_b32 v3, 31, v{VL}
    v_lshrrev_b32 v4, 5, v{VL}
    v_lshrrev_b32 v5, 1, v3
    v_and_b32 v5, 7, v5
    s_and_b32 s29, s{S_W}, 1
    s_lshl_b32 s29, s29, 13
    v_lshlrev_b32 v6, 7, v3
    v_add_u32 v6, s29, v6
    """)
    for ks in range(4):
        a(f"v_add_u32 v7, {2 * ks}, v4\nv_xor_b32 v7, v7, v5\nv_lshl_add_u32 v{V_XA + ks}, v7, 4, v6")
        a(f"v_add_u32 v{V_XB + ks}, 0x10000, v{V_XA + ks}")
    a(f"""
    v_lshrrev_b32 v5, 4, v{VL}
    v_and_b32 v5, 1, v5
    v_and_b32 v6, 3, v{VL}
    v_lshl_add_u32 v5, v5, 2, v6
    v_bfe_u32 v6, v{VL}, 2, 2
    v_lshl_add_u32 v7, v4, 3, v6
    v_lshlrev_b32 v7, 8, v7
    v_add_u32 v7, 16384, v7
    v_and_b32 v28, 4, v5
    v_and_b32 v29, 1, v5
    v_lshl_or_b32 v28, v29, 1, v28
    v_bfe_u32 v29, v5, 1, 1
    v_or_b32 v28, v28, v29
    s_cmp_ge_u32 s{S_CT}, 10
    s_cselect_b64 vcc, -1, 0
    s_lshr_b32 s29, s{S_W}, 1
    s_lshl_b32 s29, s29, 4
    v_cndmask_b32 v28, v28, v5, vcc
    v_add_u32 v28, s29, v28
    """)
    for b in range(2):
        a(f"""
        v_add_u32 v29, {8 * b}, v28
        v_lshrrev_b32 v30, 1, v29
        v_lshlrev_b32 v31, 2, v6
        v_xor_b32 v30, v30, v31
        v_and_b32 v29, 1, v29
        v_lshlrev_b32 v29, 3, v29
        v_lshl_add_u32 v29, v30, 4, v29
        v_add_u32 v{V_WA + b}, v29, v7
        v_add_u32 v{V_WB + b}, 0x10000, v{V_WA + b}
        """)


def p1_epilogue_qk(a):
    a(f"""
    s_cmp_ge_u32 s{S_CT}, 5
    s_cselect_b32 s29, {WS_KP}, {WS_QP}
    s_cselect_b32 s56, 1.0, {hex(f32bits(QSCALE))}
    s_cselect_b32 s30, 5, 0
    s_sub_u32 s57, s{S_CT}, s30
    """)
    a.srd(RA, P_WS, "s29", QP_BYTES)
    a(f"""
    v_and_b32 v3, 31, v{VL}
    v_lshrrev_b32 v4, 5, v{VL}
    s_and_b32 s29, s{S_W}, 1
    s_lshl_b32 s29, s29, 6
    v_add_u32 v5, s29, v3
    v_lshlrev_b32 v6, 2, v5
    v_add_u32 v6, {LDS_RS}, v6
    ds_read_b32 v8, v6
    ds_read_b32 v9, v6 offset:512
    ds_read_b32 v10, v6 offset:128
    ds_read_b32 v11, v6 offset:640
    s_lshr_b32 s58, s{S_W}, 1
    s_lshl_b32 s29, s58, 8
    v_lshlrev_b32 v6, 5, v4
    v_add_u32 v6, s29, v6
    v_add_u32 v6, {LDS_CS}, v6
    """)
    for b in range(2):
        for q in range(4):
            a(f"ds_read_b128 {vr(CSR + 16 * b + 4 * q, 4)}, v6 offset:{(8 * b + 4 * (q >> 1) + (q & 1)) * 16}")
    a(f"""
    s_lshl_b32 s29, s{S_TT}, 7
    v_add_u32 v5, s29, v5
    v_lshlrev_b32 v5, 4, v5
    v_lshl_add_u32 v5, v4, 15, v5
    s_lshl_b32 s59, s57, 4
    s_lshl_b32 s29, s58, 3
    s_add_u32 s59, s59, s29
    s_lshl_b32 s59, s59, 15
    s_waitcnt lgkmcnt(8)
    v_mul_f32 v8, s56, v8
    v_mul_f32 v9, s56, v9
    v_mul_f32 v10, s56, v10
    v_mul_f32 v11, s56, v11
    s_waitcnt lgkmcnt(0)
    """)
    for T in range(2):
        sc = 8 + 2 * T
        for B in range(2):
            acc = ACC + 32 * T + 16 * B
            cs = CSR + 16 * B
            for r in range(0, 16, 2):
                a(f"v_pk_mul_f32 {vr(FR + 16, 2)}, {vr(cs + r, 2)}, {vr(sc, 2)} op_sel:[0,1] op_sel_hi:[1,1]")
                a(f"v_pk_fma_f32 {vr(acc + r, 2)}, {vr(acc + r, 2)}, {vr(sc, 2)}, {vr(FR + 16, 2)} op_sel_hi:[1,0,1]")
            for r in range(8):
                a(f"v_cvt_pk_bf16_f32 v{acc + r}, v{acc + 2 * r}, v{acc + 2 * r + 1}")
            for u in range(2):
                a(f"s_add_u32 s29, s59, {(4 * B + 2 * u) * PAIR_BYTES + T * 512}")
                a(f"buffer_store_dwordx4 {vr(acc + 4 * u, 4)}, v5, {srd4(RA)}, s29 offen {OPT['p1st']}")


def p1_epilogue_v(a):
    a.srd(RA, P_WS, WS_VI, VI_BYTES)
    a(f"""
    v_and_b32 v3, 31, v{VL}
    v_lshrrev_b32 v4, 5, v{VL}
    s_lshr_b32 s58, s{S_W}, 1
    s_lshl_b32 s29, s58, 6
    v_add_u32 v5, s29, v3
    v_lshlrev_b32 v6, 2, v5
    v_add_u32 v6, {LDS_CS}, v6
    ds_read_b32 v8, v6
    ds_read_b32 v10, v6 offset:128
    s_and_b32 s29, s{S_W}, 1
    s_lshl_b32 s29, s29, 8
    v_lshlrev_b32 v6, 4, v4
    v_add_u32 v6, s29, v6
    v_add_u32 v6, {LDS_RS}, v6
    s_sub_u32 s57, s{S_CT}, 10
    s_lshl_b32 s29, s57, 7
    v_add_u32 v5, s29, v5
    v_lshlrev_b32 v5, 5, v5
    v_lshl_add_u32 v5, v4, 4, v5
    s_lshl_b32 s59, s{S_TT}, 2
    s_and_b32 s29, s{S_W}, 1
    s_lshl_b32 s29, s29, 1
    s_add_u32 s59, s59, s29
    s_mul_i32 s59, s59, {VT_BYTES}
    """)
    for T in range(2):
        for q in range(4):
            a(f"ds_read_b128 {vr(CSR + 4 * q, 4)}, v6 offset:{T * 128 + q * 32}")
            a(f"ds_read_b128 {vr(CSR + 16 + 4 * q, 4)}, v6 offset:{512 + T * 128 + q * 32}")
        a("s_waitcnt lgkmcnt(0)")
        for B in range(2):
            acc = ACC + 32 * T + 16 * B
            csr = 8 + 2 * B
            for r in range(0, 16, 2):
                a(f"v_pk_mul_f32 {vr(FR + 16, 2)}, {vr(CSR + 16 + r, 2)}, {vr(csr, 2)} op_sel_hi:[1,0]")
                a(f"v_pk_fma_f32 {vr(acc + r, 2)}, {vr(acc + r, 2)}, {vr(CSR + r, 2)}, {vr(FR + 16, 2)}")
            for r in range(8):
                a(f"v_cvt_pk_bf16_f32 v{acc + r}, v{acc + 2 * r}, v{acc + 2 * r + 1}")
            for j in range(2):
                a(f"s_add_u32 s29, s59, {T * VT_BYTES + j * VJ_BYTES + B * 1024}")
                a(f"buffer_store_dwordx4 {vr(acc + 4 * j, 4)}, v5, {srd4(RA)}, s29 offen {OPT['p1st']}")
    a(f"""
    s_cmp_lg_u32 s58, 0
    s_cbranch_scc1 L_p1_noones
    v_mov_b32 v8, {ONES}
    v_mov_b32 v9, {ONES}
    v_mov_b32 v10, {ONES}
    v_mov_b32 v11, {ONES}
    v_and_b32 v5, 1, v{VL}
    v_lshlrev_b32 v5, 4, v5
    v_bfe_u32 v6, v{VL}, 1, 2
    v_mul_u32_u24 v6, {VJ_BYTES}, v6
    v_add_u32 v5, v5, v6
    v_add_u32 v5, {640 * 32}, v5
    v_cmp_gt_u32 vcc, 8, v{VL}
    s_and_saveexec_b64 s[30:31], vcc
    buffer_store_dwordx4 v[8:11], v5, {srd4(RA)}, s59 offen sc1
    s_mov_b64 exec, s[30:31]
    """)
    a.label("L_p1_noones")


def p1_loader(a, which):
    pfx = "x" if which == 0 else "w"
    if which == 0:
        a.srd(RA, P_X, 0, S * D * 2)
        a(f"""
        v_lshrrev_b32 v3, 3, v{VL}
        v_mul_u32_u24 v3, 1280, v3
        v_lshrrev_b32 v4, 4, v{VL}
        v_and_b32 v5, 7, v{VL}
        v_xor_b32 v5, v5, v4
        v_lshl_add_u32 v20, v5, 4, v3
        v_xor_b32 v21, 64, v20
        s_lshl_b32 s29, s{S_TT}, 7
        s_mul_i32 s56, s29, 1280
        """)
    else:
        a.srd(RA, P_WQKV, 0, D * 3 * D * 2)
        a(f"""
        v_lshrrev_b32 v4, 4, v{VL}
        v_and_b32 v5, 15, v{VL}
        v_lshlrev_b32 v6, 2, v4
        v_xor_b32 v5, v5, v6
        v_mul_u32_u24 v7, 3840, v4
        v_lshl_add_u32 v20, v5, 4, v7
        s_lshl_b32 s56, s{S_CT}, 8
        """)

    def issue(stage):
        slot = (stage % 4) * SLOT + which * 16384
        for q in range(16):
            a(f"s_mov_b32 m0, {slot + q * 1024}")
            if which == 0:
                a(f"s_add_u32 s57, s56, {stage * 128 + q * 10240}")
                a(f"buffer_load_dwordx4 v{20 + (q & 1)}, {srd4(RA)}, s57 offen lds")
            else:
                a(f"s_add_u32 s57, s56, {(stage * 64 + 4 * q) * 3840}")
                a(f"buffer_load_dwordx4 v20, {srd4(RA)}, s57 offen lds")
    for st in range(2):
        issue(st)
    G = 2 if which == 0 else 16
    M = 0 if which == 0 else 24
    for s_ in range(10):
        if s_ <= 7:
            a("s_waitcnt vmcnt(16)")
        elif s_ == 8:
            a(f"s_waitcnt vmcnt({16 + G})")
        else:
            a(f"s_waitcnt vmcnt({G + M})")
        a("s_barrier")
        if s_ == 3:
            nonce_from_lds(a)
        if s_ <= 7:
            issue(s_ + 2)
        if s_ == 7:
            gather_issue(a, which)
        if s_ == 8 and which == 1:
            a("s_cmp_ge_u32 s2, 240\ns_cbranch_scc1 L_w_nomoe")
            moe_tile_loads(a)
            a("s_branch L_w_moe")
            a.label("L_w_nomoe")
            a(f"v_mov_b32 v5, {OOB}")
            for k in range(24):
                a(f"buffer_load_dword v{120 + k}, v5, {srd4(RA)}, 0 offen")
            a.label("L_w_moe")
    gather_finish(a, which, pfx)
    a("s_barrier")


def nonce_from_lds(a):
    a(f"""
    v_mov_b32 v10, {LDS_NONCE}
    ds_read_b32 v11, v10
    s_waitcnt lgkmcnt(0)
    v_readfirstlane_b32 s{S_NONCE}, v11
    """)


def gather_issue(a, which):
    if which == 0:
        a.srd(RB, P_WS, WS_STATG, S * 16)
        a(f"""
        s_lshl_b32 s29, s{S_TT}, 11
        v_lshlrev_b32 v22, 4, v{VL}
        v_add_u32 v22, s29, v22
        buffer_load_dwordx4 v[32:35], v22, {srd4(RB)}, 0 offen sc1
        buffer_load_dwordx4 v[36:39], v22, {srd4(RB)}, 0 offen offset:1024 sc1
        """)
    else:
        a.srd(RB, P_WS, WS_CSP, CSP_BYTES)
        a(f"""
        s_lshl_b32 s58, s{S_CT}, 14
        v_lshlrev_b32 v22, 4, v{VL}
        s_mov_b32 s59, s58
        """)
        for i in range(16):
            a(f"buffer_load_dwordx4 {vr(32 + 4 * i, 4)}, v22, {srd4(RB)}, s59 offen sc1")
            if i < 15:
                a("s_add_u32 s59, s59, 1024")


def gather_finish(a, which, pfx):
    n = 2 if which == 0 else 16
    a(f"s_mov_b32 s{S_SPIN}, {SPIN_MAX}")
    a(f"s_waitcnt vmcnt({0 if which == 0 else 24})")
    a(f"s_branch L_g{pfx}_test")
    a.label(f"L_g{pfx}_check")
    a("s_waitcnt vmcnt(0)")
    a.label(f"L_g{pfx}_test")
    a(f"v_cmp_ne_u32 vcc, s{S_NONCE}, v33")
    for i in range(n):
        for r in (1, 3):
            if i == 0 and r == 1:
                continue
            a(f"v_cmp_ne_u32 s[30:31], s{S_NONCE}, v{32 + 4 * i + r}\ns_or_b64 vcc, vcc, s[30:31]")
    a(f"s_cbranch_vccz L_g{pfx}_ok\ns_sleep 4")
    gather_issue(a, which)
    spin_back(a, f"L_g{pfx}_check")
    a("s_waitcnt vmcnt(0)")
    a.label(f"L_g{pfx}_ok")
    if which == 0:
        a(f"""
        v_mul_f32 v32, v32, v34
        v_mul_f32 v36, v36, v38
        v_sub_f32 v32, 0, v32
        v_sub_f32 v36, 0, v36
        v_lshlrev_b32 v22, 2, v{VL}
        v_add_u32 v22, {LDS_RS}, v22
        ds_write_b32 v22, v34
        ds_write_b32 v22, v38 offset:256
        ds_write_b32 v22, v32 offset:512
        ds_write_b32 v22, v36 offset:768
        """)
    else:
        for i in range(1, 16):
            a(f"v_add_f32 v32, v32, v{32 + 4 * i}\nv_add_f32 v34, v34, v{34 + 4 * i}")
        a(f"""
        v_mov_b32 v33, v34
        v_lshlrev_b32 v22, 3, v{VL}
        v_add_u32 v22, {LDS_CS}, v22
        ds_write_b64 v22, v[32:33]
        """)
    a("s_waitcnt lgkmcnt(0)")


def top2(a, srd, vk, s_i0, s_i1):
    a(f"v_lshlrev_b32 v3, 4, v{VL}")
    for i in range(8):
        a(f"buffer_load_dwordx4 {vr(vk + 4 * i, 4)}, v3, {srd4(srd)}, 0 offen offset:{(i % 4) * 1024} sc1")
        if i == 3:
            a("v_add_u32 v3, 4096, v3")
    m1, m2, n1, n2, t = vk + 32, vk + 33, vk + 34, vk + 35, vk + 36
    a(f"v_mov_b32 v{m1}, 0\nv_mov_b32 v{m2}, 0")
    for i in range(8):
        a(f"s_waitcnt vmcnt({7 - i})")
        for r in range(4):
            a(f"v_med3_u32 v{m2}, v{m1}, v{m2}, v{vk + 4 * i + r}")
            a(f"v_max_u32 v{m1}, v{m1}, v{vk + 4 * i + r}")
    for ctl in ("row_shr:1 row_mask:0xf", "row_shr:2 row_mask:0xf", "row_shr:4 row_mask:0xf", "row_shr:8 row_mask:0xf",
                "row_bcast:15 row_mask:0xa", "row_bcast:31 row_mask:0xc"):
        a(f"v_mov_b32 v{n1}, 0\nv_mov_b32 v{n2}, 0\ns_nop 1")
        a(f"v_mov_b32_dpp v{n1}, v{m1} {ctl} bank_mask:0xf")
        a(f"v_mov_b32_dpp v{n2}, v{m2} {ctl} bank_mask:0xf")
        a(f"v_min_u32 v{t}, v{m1}, v{n1}")
        a(f"v_max_u32 v{m1}, v{m1}, v{n1}")
        a(f"v_max3_u32 v{m2}, v{t}, v{m2}, v{n2}")
    a(f"s_nop 0\nv_readlane_b32 s{s_i0}, v{m1}, 63\nv_readlane_b32 s{s_i1}, v{m2}, 63")
    a(f"s_and_b32 s{s_i0}, s{s_i0}, 0x7ff\ns_and_b32 s{s_i1}, s{s_i1}, 0x7ff")


S_I0, S_I1, S_CB, S_KS = 60, 61, 68, 69
L_GW, L_DW, L_SCR = LDS_AUX, LDS_AUX + 16384, LDS_AUX + 24576


def read_idx(a, label):
    a.srd(RC, P_WS, WS_IDX, 16)
    a(f"s_mov_b32 s{S_SPIN}, {SPIN_MAX}\nv_mov_b32 v5, 0")
    a.label(label)
    a(f"""
    buffer_load_dwordx4 v[8:11], v5, {srd4(RC)}, 0 offen sc1
    s_waitcnt vmcnt(0)
    v_readfirstlane_b32 s{S_I0}, v8
    v_readfirstlane_b32 s29, v9
    v_readfirstlane_b32 s{S_I1}, v10
    v_readfirstlane_b32 s30, v11
    s_xor_b32 s29, s29, s{S_NONCE}
    s_xor_b32 s30, s30, s{S_NONCE}
    s_or_b32 s29, s29, s30
    s_cmp_eq_u32 s29, 0
    s_cbranch_scc1 {label}_ok
    s_sleep 8
    """)
    spin_back(a, label)
    a.label(label + "_ok")


def moe_select(a):
    a.srd(RC, P_WS, WS_F0, FLAG_AREA)
    a(f"v_lshlrev_b32 v5, 7, v{VL}\ns_mov_b32 s{S_SPIN}, {SPIN_MAX}")
    a.label("L_sel_f0")
    for i in range(4):
        a(f"s_mov_b32 s29, {i * 8192}\nbuffer_load_dword v{10 + i}, v5, {srd4(RC)}, s29 offen sc1")
    a("s_waitcnt vmcnt(0)")
    a(f"v_cmp_ne_u32 vcc, s{S_NONCE}, v10")
    for i in range(1, 4):
        a(f"v_cmp_ne_u32 s[30:31], s{S_NONCE}, v{10 + i}\ns_or_b64 vcc, vcc, s[30:31]")
    a("s_cbranch_vccz L_sel_f0_ok\ns_sleep 8")
    spin_back(a, "L_sel_f0")
    a.label("L_sel_f0_ok")
    a.srd(RC, P_WS, WS_KEY, S * 4)
    top2(a, RC, 64, S_I0, S_I1)
    a.srd(RC, P_WS, WS_IDX, 16)
    a(f"""
    v_mov_b32 v8, s{S_I0}
    v_mov_b32 v9, s{S_NONCE}
    v_mov_b32 v10, s{S_I1}
    v_mov_b32 v11, s{S_NONCE}
    v_mov_b32 v12, 0
    s_mov_b64 exec, 1
    buffer_store_dwordx4 v[8:11], v12, {srd4(RC)}, 0 offen sc1
    s_mov_b64 exec, -1
    """)


def sigmoid_like(a, dst, src, tmp):
    a(f"s_mov_b32 s29, {hex(f32bits(-LOG2E))}")
    for d, s_ in zip(dst, src):
        a(f"v_mul_f32 v{d}, s29, v{s_}")
    for d in dst:
        a(f"v_exp_f32 v{d}, v{d}")
    a("s_nop 0")
    for d in dst:
        a(f"v_add_f32 v{d}, 1.0, v{d}")
    for d in dst:
        a(f"v_rcp_f32 v{d}, v{d}")
    a("s_nop 0")


def moe_task_ids(a):
    a(f"""
    s_mul_i32 s{S_CB}, s2, 205
    s_lshr_b32 s{S_CB}, s{S_CB}, 11
    s_mul_i32 s29, s{S_CB}, 10
    s_sub_u32 s{S_KS}, s2, s29
    """)


def moe_tile_loads(a):
    moe_task_ids(a)
    a.srd(RC, P_WG, 0, D * F * 2)
    a.srd(RD, P_WU, 0, D * F * 2)
    a.srd(RE, P_WD, 0, F * D * 2)
    a(f"""
    v_lshrrev_b32 v3, 3, v{VL}
    v_and_b32 v4, 7, v{VL}
    v_mul_u32_u24 v5, 3072, v3
    v_lshl_add_u32 v5, v4, 4, v5
    v_mul_u32_u24 v6, 1280, v3
    v_lshl_add_u32 v6, v4, 4, v6
    s_mul_i32 s62, s{S_KS}, {64 * 3072}
    s_lshl_b32 s29, s{S_CB}, 7
    s_add_u32 s62, s62, s29
    s_mul_i32 s63, s{S_CB}, {64 * 1280}
    s_lshl_b32 s29, s{S_KS}, 7
    s_add_u32 s63, s63, s29
    """)
    for q in range(8):
        for mtx, srd in ((0, RC), (1, RD)):
            a(f"s_mov_b32 m0, {L_GW + mtx * 8192 + q * 1024}")
            a(f"s_add_u32 s64, s62, {q * 8 * 3072}")
            a(f"buffer_load_dwordx4 v5, {srd4(srd)}, s64 offen lds")
    for q in range(8):
        a(f"s_mov_b32 m0, {L_DW + q * 1024}")
        a(f"s_add_u32 s64, s63, {q * 8 * 1280}")
        a(f"buffer_load_dwordx4 v6, {srd4(RE)}, s64 offen lds")


def moe_tasks(a):
    moe_task_ids(a)
    read_idx(a, "L_g_idx")
    a.srd(RA, P_X, 0, S * D * 2)
    a.srd(RB, P_WS, WS_STAT, S * 8)
    a(f"""
    v_and_b32 v5, 15, v{VL}
    v_lshrrev_b32 v6, 4, v{VL}
    v_mov_b32 v7, {OOB >> 11}
    v_mov_b32 v8, s{S_I0}
    v_mov_b32 v9, s{S_I1}
    v_cmp_eq_u32 vcc, 0, v5
    v_cmp_eq_u32 s[30:31], 1, v5
    s_nop 0
    v_cndmask_b32 v7, v7, v8, vcc
    v_cndmask_b32 v7, v7, v9, s[30:31]
    v_mul_u32_u24 v8, 1280, v7
    v_lshl_add_u32 v8, v6, 4, v8
    v_lshlrev_b32 v9, 3, v7
    s_lshl_b32 s29, s{S_KS}, 7
    buffer_load_dwordx4 v[16:19], v8, {srd4(RA)}, s29 offen
    buffer_load_dwordx4 v[20:23], v8, {srd4(RA)}, s29 offen offset:64
    buffer_load_dwordx2 v[12:13], v9, {srd4(RB)}, 0 offen sc1
    v_bfe_u32 v8, v{VL}, 2, 2
    v_and_b32 v9, 3, v{VL}
    v_lshl_add_u32 v8, v6, 3, v8
    v_lshlrev_b32 v8, 7, v8
    v_lshl_add_u32 v8, v9, 3, v8
    v_add_u32 v24, {L_GW}, v8
    v_add_u32 v25, {L_DW}, v8
    """)
    for r in range(32):
        a(f"v_mov_b32 v{32 + r}, 0")
    a("""
    s_waitcnt vmcnt(0)
    v_mul_f32 v12, v12, v13
    v_sub_f32 v12, 0, v12
    """)
    for r in range(8):
        a(f"""
        v_lshlrev_b32 v14, 16, v{16 + r}
        v_and_b32 v15, 0xffff0000, v{16 + r}
        v_fma_f32 v14, v14, v13, v12
        v_fma_f32 v15, v15, v13, v12
        v_cvt_pk_bf16_f32 v{16 + r}, v14, v15
        """)
    for st in range(2):
        for mtx in range(2):
            for nb in range(4):
                f = 64 + 4 * (mtx * 4 + nb)
                for sec in range(2):
                    a(f"ds_read_b64_tr_b16 {vr(f + 2 * sec, 2)}, v24 offset:{mtx * 8192 + (32 * st + 4 * sec) * 128 + nb * 32}")
        a("s_waitcnt lgkmcnt(0)")
        for mtx in range(2):
            for nb in range(4):
                acc = vr(32 + 4 * (mtx * 4 + nb), 4)
                a(f"{MF16} {acc}, {vr(16 + 4 * st, 4)}, {vr(64 + 4 * (mtx * 4 + nb), 4)}, {acc}")
    a(f"""
    v_lshlrev_b32 v8, 2, v{VL}
    v_add_u32 v8, {L_SCR}, v8
    s_nop 7
    s_mov_b64 exec, 0xffff
    """)
    for mtx in range(2):
        for nb in range(4):
            for tok in range(2):
                a(f"ds_write_b32 v8, v{32 + 4 * (mtx * 4 + nb) + tok} offset:{(mtx * 2 + tok) * 256 + nb * 64}")
    a.srd(RA, P_WS, WS_PG, 240 * 1024)
    a(f"""
    s_mov_b64 exec, -1
    v_lshlrev_b32 v9, 4, v{VL}
    v_add_u32 v8, {L_SCR}, v9
    s_waitcnt lgkmcnt(0)
    ds_read_b128 v[12:15], v8
    s_lshl_b32 s29, s2, 10
    s_waitcnt lgkmcnt(0)
    buffer_store_dwordx4 v[12:15], v9, {srd4(RA)}, s29 offen sc1
    s_waitcnt vmcnt(0)
    """)
    store_flag(a, WS_FG, 2)
    a.srd(RC, P_WS, WS_FG, FLAG_AREA)
    a(f"""
    s_mul_i32 s29, s{S_CB}, 10
    v_min_u32 v5, 9, v{VL}
    v_add_u32 v5, s29, v5
    v_lshlrev_b32 v5, 7, v5
    """)
    poll(a, "L_d_fg", 5, RC, 1, sleep=8)
    a(f"s_mul_i32 s56, s{S_CB}, 10240\nv_lshlrev_b32 v9, 4, v{VL}")
    for i in range(10):
        a(f"buffer_load_dwordx4 {vr(32 + 4 * i, 4)}, v9, {srd4(RA)}, s56 offen sc1")
        if i < 9:
            a("s_add_u32 s56, s56, 1024")
    for i in range(1, 10):
        a(f"s_waitcnt vmcnt({9 - i})")
        for r in range(4):
            a(f"v_add_f32 v{32 + r}, v{32 + r}, v{32 + 4 * i + r}")
    for r in range(4):
        a(f"v_mov_b32 v{36 + r}, 0")
    a("s_nop 1")
    for r in range(4):
        a(f"v_permlane32_swap_b32 v{32 + r}, v{36 + r}")
    sigmoid_like(a, [40, 41, 42, 43], [32, 33, 34, 35], None)
    for r in range(4):
        a(f"v_mul_f32 v{40 + r}, v{40 + r}, v{32 + r}")
    for r in range(4):
        a(f"v_mul_f32 v{40 + r}, v{40 + r}, v{36 + r}")
    a(f"""
    v_cvt_pk_bf16_f32 v40, v40, v41
    v_cvt_pk_bf16_f32 v41, v42, v43
    v_lshlrev_b32 v8, 3, v{VL}
    v_add_u32 v8, {L_SCR}, v8
    s_mov_b32 exec_lo, -1
    s_mov_b32 exec_hi, 0
    ds_write_b64 v8, v[40:41]
    s_mov_b64 exec, -1
    v_and_b32 v8, 1, v{VL}
    v_lshlrev_b32 v8, 7, v8
    v_lshl_add_u32 v8, v6, 4, v8
    v_add_u32 v8, {L_SCR}, v8
    s_waitcnt lgkmcnt(0)
    ds_read_b128 v[16:19], v8
    ds_read_b128 v[20:23], v8 offset:64
    """)
    for r in range(16):
        a(f"v_mov_b32 v{32 + r}, 0")
    for st in range(2):
        for nb in range(4):
            for sec in range(2):
                a(f"ds_read_b64_tr_b16 {vr(64 + 4 * nb + 2 * sec, 2)}, v25 offset:{(32 * st + 4 * sec) * 128 + nb * 32}")
        a("s_waitcnt lgkmcnt(0)")
        for nb in range(4):
            acc = vr(32 + 4 * nb, 4)
            a(f"{MF16} {acc}, {vr(16 + 4 * st, 4)}, {vr(64 + 4 * nb, 4)}, {acc}")
    a(f"""
    v_lshlrev_b32 v8, 2, v{VL}
    v_add_u32 v8, {L_SCR + 1024}, v8
    s_nop 7
    s_mov_b64 exec, 0xffff
    """)
    for nb in range(4):
        for tok in range(2):
            a(f"ds_write_b32 v8, v{32 + 4 * nb + tok} offset:{tok * 256 + nb * 64}")
    a.srd(RA, P_WS, WS_PY, 240 * 512)
    a(f"""
    s_mov_b32 exec_lo, -1
    s_mov_b32 exec_hi, 0
    v_add_u32 v8, {L_SCR + 1024}, v9
    s_waitcnt lgkmcnt(0)
    ds_read_b128 v[12:15], v8
    s_lshl_b32 s29, s2, 9
    s_waitcnt lgkmcnt(0)
    buffer_store_dwordx4 v[12:15], v9, {srd4(RA)}, s29 offen sc1
    s_mov_b64 exec, -1
    s_waitcnt vmcnt(0)
    """)
    store_flag(a, WS_FD, 2)


def moe_finish(a):
    a(f"s_sub_u32 s{S_KS}, s2, 240")
    read_idx(a, "L_y_idx")
    a.srd(RB, P_WS, WS_R, S * 4)
    a(f"""
    v_lshrrev_b32 v6, 4, v{VL}
    v_mov_b32 v8, s{S_I0}
    v_mov_b32 v9, s{S_I1}
    v_and_b32 v7, 1, v6
    v_cmp_eq_u32 vcc, 0, v7
    s_nop 1
    v_cndmask_b32 v8, v9, v8, vcc
    v_lshlrev_b32 v8, 2, v8
    buffer_load_dword v16, v8, {srd4(RB)}, 0 offen sc1
    """)
    a.srd(RC, P_WS, WS_FD, FLAG_AREA)
    a(f"""
    v_min_u32 v5, 23, v{VL}
    v_mul_u32_u24 v5, 10, v5
    v_add_u32 v5, s{S_KS}, v5
    v_lshlrev_b32 v5, 7, v5
    """)
    poll(a, "L_y_fd", 5, RC, 1, sleep=8)
    a.srd(RA, P_WS, WS_PY, 240 * 512)
    a(f"""
    v_and_b32 v9, 31, v{VL}
    v_lshlrev_b32 v9, 4, v9
    s_lshl_b32 s56, s{S_KS}, 9
    """)
    for i in range(24):
        a(f"buffer_load_dwordx4 {vr(32 + 4 * i, 4)}, v9, {srd4(RA)}, s56 offen sc1")
        if i < 23:
            a("s_add_u32 s56, s56, 5120")
    sigmoid_like(a, [17], [16], None)
    for i in range(1, 24):
        a(f"s_waitcnt vmcnt({23 - i})")
        for r in range(4):
            a(f"v_add_f32 v{32 + r}, v{32 + r}, v{32 + 4 * i + r}")
    for r in range(4):
        a(f"v_mul_f32 v{32 + r}, v{32 + r}, v17")
    a.srd(RA, P_WS, WS_Y, 2 * D * 4)
    a(f"""
    v_and_b32 v8, 15, v{VL}
    v_lshlrev_b32 v8, 4, v8
    v_mul_u32_u24 v7, 2560, v7
    v_add_u32 v8, v8, v7
    s_lshl_b32 s29, s{S_KS}, 8
    s_mov_b32 exec_lo, -1
    s_mov_b32 exec_hi, 0
    buffer_store_dwordx4 v[32:35], v8, {srd4(RA)}, s29 offen sc1
    s_mov_b64 exec, -1
    s_waitcnt vmcnt(0)
    """)
    store_flag(a, WS_FY, S_KS)


def p3_map(a, s_tt64, s_oct):
    a(f"""
    s_and_b32 s29, s2, 7
    s_lshr_b32 s30, s2, 3
    s_and_b32 s31, s30, 3
    s_lshl_b32 s29, s29, 2
    s_add_u32 s{s_tt64}, s29, s31
    s_lshr_b32 s{s_oct}, s30, 2
    """)


def wait_ready(a, label):
    a(f"v_mov_b32 v10, {LDS_READY}\ns_mov_b32 s{S_SPIN}, {SPIN_MAX * 8}")
    a.label(label)
    a(f"""
    ds_read_b32 v11, v10
    s_waitcnt lgkmcnt(0)
    v_readfirstlane_b32 s29, v11
    s_cmp_eq_u32 s29, s{S_NONCE}
    s_cbranch_scc1 {label}_ok
    s_sleep 8
    """)
    spin_back(a, label)
    a.label(label + "_ok")


def wait_drained(a, label):
    a(f"s_cmp_ge_u32 s{S_CT}, 15\ns_cbranch_scc1 {label}_ok")
    a(f"v_mov_b32 v10, {LDS_DONE}\ns_mov_b32 s{S_SPIN}, {SPIN_MAX * 8}")
    a.label(label)
    a(f"""
    ds_read_b32 v11, v10
    s_waitcnt lgkmcnt(0)
    v_readfirstlane_b32 s29, v11
    s_cmp_ge_u32 s29, 4
    s_cbranch_scc1 {label}_ok
    s_sleep 4
    """)
    spin_back(a, label)
    a.label(label + "_ok")


def wo_loader(a):
    p3_map(a, 56, 57)
    for q in range(5):
        a(f"""
        v_add_u32 v3, {64 * q}, v{VL}
        v_mul_u32_u24 v4, 6554, v3
        v_lshrrev_b32 v4, 16, v4
        v_mul_u32_u24 v5, 10, v4
        v_sub_u32 v5, v3, v5
        v_mul_u32_u24 v4, 1280, v4
        v_lshl_add_u32 v{20 + q}, v5, 4, v4
        """)
    a.srd(RA, P_WO, 0, D * D * 2)
    a("s_mul_i32 s58, s57, 160")
    for g in range(20):
        for q in range(5):
            a(f"s_mov_b32 m0, {g * 5120 + q * 1024}")
            a(f"s_add_u32 s59, s58, {g * 32 * 1280}")
            a(f"buffer_load_dwordx4 v{20 + q}, {srd4(RA)}, s59 offen lds")
        a(f"s_waitcnt vmcnt({OPT['wo_inflight']})")


VB, PACC, FA, VX, VY, VST = 32, 112, 152, 228, 204, 224
S_T64, S_OC = 66, 70


def p3_early(a):
    p3_map(a, S_T64, S_OC)
    a.srd(RA, P_X, 0, S * D * 2)
    a.srd(RB, P_WS, WS_F0, FLAG_AREA)
    a.srd(RC, P_WS, WS_IDX, 16)
    a(f"""
    v_and_b32 v3, 15, v{VL}
    v_lshrrev_b32 v4, 4, v{VL}
    s_and_b32 s58, s{S_W}, 1
    s_lshr_b32 s59, s{S_W}, 1
    s_lshl_b32 s60, s{S_T64}, 1
    s_add_u32 s60, s60, s58
    s_lshl_b32 s29, s60, 5
    s_lshl_b32 s30, s59, 4
    s_add_u32 s29, s29, s30
    v_add_u32 v21, s29, v3
    v_mul_u32_u24 v19, 1280, v21
    s_mul_i32 s29, s{S_OC}, 160
    v_lshl_add_u32 v19, v4, 3, v19
    v_add_u32 v19, s29, v19
    s_lshl_b32 s30, s{S_T64}, 3
    v_and_b32 v6, 7, v{VL}
    v_add_u32 v6, s30, v6
    v_lshlrev_b32 v12, 7, v6
    v_mov_b32 v5, 0
    """)
    for blk in range(5):
        a(f"buffer_load_dwordx2 {vr(VX + 2 * blk, 2)}, v19, {srd4(RA)}, 0 offen offset:{32 * blk}")
    a(f"buffer_load_dword v13, v12, {srd4(RB)}, 0 offen sc1")
    a(f"buffer_load_dwordx4 v[8:11], v5, {srd4(RC)}, 0 offen sc1")


def p3_body(a):
    a.srd(RD, P_WS, WS_OM, OM_BYTES)
    a.srd(RA, P_WS, WS_OT, OT_BYTES)
    a.srd(RE, P_WS, WS_F2, FLAG_AREA)
    a(f"""
    v_lshrrev_b32 v6, 1, v4
    v_and_b32 v7, 1, v4
    v_lshlrev_b32 v20, 10, v6
    v_lshl_add_u32 v20, v7, 9, v20
    v_lshl_add_u32 v17, v3, 4, v20
    v_lshlrev_b32 v20, 9, v4
    v_lshl_add_u32 v18, v3, 3, v20
    s_lshl_b32 s61, s60, 15
    s_lshl_b32 s29, s59, 14
    s_add_u32 s61, s61, s29
    s_lshl_b32 s62, s60, 13
    s_lshl_b32 s29, s59, 12
    s_add_u32 s62, s62, s29
    v_bfe_u32 v22, v{VL}, 2, 2
    v_and_b32 v23, 3, v{VL}
    v_mul_u32_u24 v20, 20, v6
    v_lshl_add_u32 v20, v7, 2, v20
    v_add_u32 v20, v20, v22
    v_mul_u32_u24 v20, 160, v20
    v_lshl_add_u32 v14, v23, 3, v20
    s_mul_i32 s29, s59, {8 * 6400}
    v_add_u32 v14, s29, v14
    v_mul_u32_u24 v20, 40, v4
    v_add_u32 v20, 16, v20
    v_add_u32 v20, v20, v22
    v_mul_u32_u24 v20, 160, v20
    v_lshl_add_u32 v15, v23, 3, v20
    s_mul_i32 s29, s59, {2 * 25600}
    v_add_u32 v15, s29, v15
    s_lshr_b32 s29, s{S_T64}, 2
    s_lshl_b32 s29, s29, 5
    s_lshl_b32 s30, s59, 4
    s_add_u32 s29, s29, s30
    v_add_u32 v16, s29, v3
    v_lshlrev_b32 v16, 7, v16
    """)

    def a_reads(st, fset):
        for blk in range(5):
            for sec in range(2):
                dst = vr(FA + 20 * fset + 4 * blk + 2 * sec, 2)
                if st < 8:
                    a(f"ds_read_b64_tr_b16 {dst}, v14 offset:{st * 6400 + sec * 1280 + blk * 32}")
                else:
                    a(f"ds_read_b64_tr_b16 {dst}, v15 offset:{(st - 8) * 25600 + sec * 3200 + blk * 32}")
    seq = [0, 1, 2, 3, 8, 4, 5, 6, 7, 9]
    a_reads(seq[0], 0)
    a(f"s_mov_b32 s{S_SPIN}, {SPIN_MAX}")
    a.label("L_p3_f2")
    a(f"""
    buffer_load_dword v20, v16, {srd4(RE)}, 0 offen sc1
    s_waitcnt vmcnt(0)
    v_cmp_ne_u32 vcc, s{S_NONCE}, v20
    s_cbranch_vccz L_p3_f2_ok
    s_sleep {OPT["poll_sleep"]}
    """)
    spin_back(a, "L_p3_f2")
    a.label("L_p3_f2_ok")
    stamp(a, 9)
    nload = []
    for st in seq:
        n = 0
        for sub in range(2):
            dst = VB + 8 * st + 4 * sub
            if st < 8:
                a(f"s_add_u32 s29, s61, {st * 2048}")
                a(f"buffer_load_dwordx4 {vr(dst, 4)}, v17, {srd4(RD)}, s29 offen offset:{256 * sub} sc1")
                n += 1
            else:
                a(f"s_add_u32 s29, s62, {(st - 8) * 2048}")
                for sec in range(2):
                    a(f"buffer_load_dwordx2 {vr(dst + 2 * sec, 2)}, v18, {srd4(RA)}, s29 offen offset:{128 * sub + 256 * sec} sc1")
                    n += 1
        nload.append(n)
    a(f"s_mov_b32 s{S_SPIN}, {SPIN_MAX}")
    a.label("L_p3_pre")
    a(f"""
    v_cmp_ne_u32 vcc, s{S_NONCE}, v13
    v_readfirstlane_b32 s63, v8
    v_readfirstlane_b32 s29, v9
    v_readfirstlane_b32 s64, v10
    v_readfirstlane_b32 s30, v11
    s_xor_b32 s29, s29, s{S_NONCE}
    s_xor_b32 s30, s30, s{S_NONCE}
    s_or_b32 s29, s29, s30
    s_or_b32 s29, s29, vcc_lo
    s_or_b32 s29, s29, vcc_hi
    s_cmp_eq_u32 s29, 0
    s_cbranch_scc1 L_p3_pre_ok
    s_sleep 4
    buffer_load_dword v13, v12, {srd4(RB)}, 0 offen sc1
    buffer_load_dwordx4 v[8:11], v5, {srd4(RC)}, 0 offen sc1
    s_waitcnt vmcnt(0)
    """)
    spin_back(a, "L_p3_pre")
    a.label("L_p3_pre_ok")
    a.srd(RB, P_WS, WS_STAT, S * 8)
    a(f"v_lshlrev_b32 v22, 3, v21")
    a(f"buffer_load_dwordx2 {vr(VST, 2)}, v22, {srd4(RB)}, 0 offen sc1")
    a(f"""
    v_mov_b32 v25, {OOB}
    s_lshr_b32 s29, s63, 6
    s_lshr_b32 s30, s64, 6
    s_cmp_eq_u32 s29, s{S_T64}
    s_cbranch_scc1 L_p3_routed
    s_cmp_eq_u32 s30, s{S_T64}
    s_cbranch_scc0 L_p3_noy
    """)
    a.label("L_p3_routed")
    a.srd(RC, P_WS, WS_FY, FLAG_AREA)
    a(f"""
    s_mul_i32 s29, s{S_OC}, 80
    s_lshr_b32 s29, s29, 6
    v_min_u32 v5, 1, v{VL}
    v_add_u32 v5, s29, v5
    v_lshlrev_b32 v5, 7, v5
    """)
    poll(a, "L_p3_fy", 5, RC, 1, sleep=4)
    a(f"""
    v_lshlrev_b32 v23, 4, v4
    s_mul_i32 s29, s{S_OC}, 320
    v_add_u32 v23, s29, v23
    v_add_u32 v24, 2560, v23
    v_cmp_eq_u32 vcc, s63, v21
    v_cmp_eq_u32 s[30:31], s64, v21
    s_nop 0
    v_cndmask_b32 v25, v25, v23, vcc
    v_cndmask_b32 v25, v25, v24, s[30:31]
    """)
    a.label("L_p3_noy")
    a.srd(RC, P_WS, WS_Y, 2 * D * 4)
    for blk in range(5):
        a(f"buffer_load_dwordx4 {vr(VY + 4 * blk, 4)}, v25, {srd4(RC)}, 0 offen offset:{64 * blk} sc1")
    tail_loads = 6
    fset = 0
    for n, st in enumerate(seq):
        if n + 1 < len(seq):
            a_reads(seq[n + 1], fset ^ 1)
            a("s_waitcnt lgkmcnt(10)")
        else:
            a("s_waitcnt lgkmcnt(0)")
        a(f"s_waitcnt vmcnt({sum(nload[n + 1:]) + tail_loads})")
        for blk in range(5):
            for sub in range(2):
                acc = vr(PACC + 20 * sub + 4 * blk, 4)
                c = acc if n else "0"
                a(f"{MF16} {acc}, {vr(FA + 20 * fset + 4 * blk, 4)}, {vr(VB + 8 * st + 4 * sub, 4)}, {c}")
        fset ^= 1
        if n == len(seq) - 1:
            a(f"""
            s_waitcnt vmcnt(0)
            v_add_f32 v26, 1.0, v{VST + 1}
            v_mul_f32 v27, v{VST}, v{VST + 1}
            """)
            for blk in range(5):
                x, y = VX + 2 * blk, VY + 4 * blk
                a(f"""
                v_lshlrev_b32 v28, 16, v{x}
                v_and_b32 v29, 0xffff0000, v{x}
                v_lshlrev_b32 v30, 16, v{x + 1}
                v_and_b32 v31, 0xffff0000, v{x + 1}
                """)
                for r in range(4):
                    a(f"v_fma_f32 v{28 + r}, v{28 + r}, v26, -v27")
                for r in range(4):
                    a(f"v_add_f32 v{y + r}, v{y + r}, v{28 + r}")
    stamp(a, 10)
    a.srd(RE, P_OUT, 0, S * D * 2)
    a(f"""
    s_mul_i32 s29, s{S_W}, 5120
    s_add_u32 s29, s29, {LDS_XCH}
    v_lshlrev_b32 v5, 4, v{VL}
    v_add_u32 v6, s29, v5
    s_xor_b32 s30, s{S_W}, 2
    s_mul_i32 s30, s30, 5120
    s_add_u32 s30, s30, {LDS_XCH}
    v_add_u32 v7, s30, v5
    s_cmp_eq_u32 s59, 0
    s_cbranch_scc0 L_p3_kh1
    """)
    for kh in range(2):
        if kh == 1:
            a.label("L_p3_kh1")
        send, keep = PACC + 20 * (1 - kh), PACC + 20 * kh
        for g in range(5):
            a(f"ds_write_b128 v6, {vr(send + 4 * g, 4)} offset:{g * 1024}")
        for r in range(20):
            a(f"v_add_f32 v{VY + r}, v{VY + r}, v{keep + r}")
        a("s_waitcnt lgkmcnt(0)\ns_barrier")
        for g in range(5):
            a(f"ds_read_b128 {vr(FA + 4 * g, 4)}, v7 offset:{g * 1024}")
        if kh == 0:
            a("s_branch L_p3_red")
    a.label("L_p3_red")
    for blk in range(5):
        acc, y = FA + 4 * blk, VY + 4 * blk
        a(f"s_waitcnt lgkmcnt({4 - blk})")
        for r in range(4):
            a(f"v_add_f32 v{acc + r}, v{acc + r}, v{y + r}")
        a(f"v_cvt_pk_bf16_f32 v{acc}, v{acc}, v{acc + 1}\nv_cvt_pk_bf16_f32 v{acc + 1}, v{acc + 2}, v{acc + 3}")
        a(f"buffer_store_dwordx2 {vr(acc, 2)}, v19, {srd4(RE)}, 0 offen offset:{32 * blk}")


def attention_flag_addresses(a):
    a(f"""
    s_mul_i32 s29, s56, 20
    s_lshr_b32 s30, s29, 7
    s_add_u32 s29, s29, 19
    s_lshr_b32 s31, s29, 7
    v_and_b32 v8, 1, v{VL}
    v_mov_b32 v9, s30
    v_mov_b32 v10, s31
    v_cmp_eq_u32 vcc, 0, v8
    s_lshr_b32 s29, s{S_W}, 1
    s_lshl_b32 s29, s29, 3
    v_cndmask_b32 v9, v10, v9, vcc
    v_bfe_u32 v10, v{VL}, 1, 1
    v_mul_u32_u24 v10, 5, v10
    v_add_u32 v10, v10, v9
    v_add_u32 v10, 5, v10
    v_bfe_u32 v11, v{VL}, 2, 1
    v_add_u32 v11, s29, v11
    v_lshl_add_u32 v10, v10, 4, v11
    s_lshr_b32 s30, s{k2.S_TT32}, 2
    v_lshl_add_u32 v11, v9, 4, s30
    v_cmp_gt_u32 vcc, 8, v{VL}
    s_nop 1
    v_cndmask_b32 v10, v11, v10, vcc
    v_lshlrev_b32 v{k2.V_FL}, 7, v10
    """)


def attention_setup(a):
    k2.S_Q, k2.S_K, k2.S_V, k2.S_OM, k2.S_OT = RA, RB, RC, RD, RE
    k2.S_W, k2.S_HEAD, k2.S_QB, k2.S_KOFF, k2.S_CNT, k2.S_VOFF = S_W, 56, 57, 58, 59, 60
    k2.S_TT32, k2.S_PAR, k2.S_PB, k2.S_T0, k2.S_T1 = 61, 62, 63, 64, 65
    k2.LD["f"] = " sc1" if OPT["kv_sc1"] else ""
    k2.STAMPS[:] = [7, 8]
    a(f"v_mov_b32 v6, v{VL}")
    k2.attn_setup(a)
    k2.attn_prepare(a, P_WS)
    attention_flag_addresses(a)


def gen_fused(a, name, stop_after=3):
    a.begin_kernel(name)
    a("s_cmp_ge_u32 s2, 256\ns_cbranch_scc1 L_end")
    stamp(a, 0)
    a(f"""
    s_load_dwordx4 s[4:7], s[0:1], {KA_X}
    s_load_dwordx2 s[8:9], s[0:1], {KA_WO}
    s_load_dwordx8 s[12:19], s[0:1], {KA_WR}
    s_load_dwordx4 s[20:23], s[0:1], {KA_OUT}
    s_load_dwordx2 s[24:25], s[0:1], {KA_WS}
    v_lshrrev_b32 v1, 6, v0
    v_and_b32 v{VL}, 63, v0
    v_readfirstlane_b32 s{S_W}, v1
    s_and_b32 s29, s2, 7
    s_lshr_b32 s30, s2, 3
    s_and_b32 s{S_TT}, s29, 1
    s_lshl_b32 s{S_TT}, s{S_TT}, 3
    s_and_b32 s{S_CT}, s30, 7
    s_add_u32 s{S_TT}, s{S_TT}, s{S_CT}
    s_lshr_b32 s{S_CT}, s29, 1
    s_lshl_b32 s{S_CT}, s{S_CT}, 2
    s_lshr_b32 s30, s30, 3
    s_add_u32 s{S_CT}, s{S_CT}, s30
    s_waitcnt lgkmcnt(0)
    s_cmp_ge_u32 s{S_W}, 4
    s_cbranch_scc1 L_helper
    """)
    a("s_or_b32 s29, s2, s3\ns_cmp_lg_u32 s29, 0\ns_cbranch_scc1 L_nononce")
    a.srd(RF, P_DBG, 0, 256)
    a(f"""
    s_memrealtime s[30:31]
    s_waitcnt lgkmcnt(0)
    s_or_b32 s30, s30, 1
    v_mov_b32 v10, 0
    v_mov_b32 v11, s30
    buffer_store_dword v11, v10, {srd4(RF)}, 0 offen sc1
    """)
    a.label("L_nononce")
    a(f"""
    v_mov_b32 v10, {LDS_DONE}
    v_mov_b32 v12, 0
    v_mov_b32 v13, 0
    ds_write_b64 v10, v[12:13]
    """)
    p1_produce_loads(a)
    a(f"s_cmp_ge_u32 s{S_CT}, 15\ns_cbranch_scc1 L_p1_idle")
    p1_addresses(a)
    for r in range(64):
        a(f"v_mov_b32 v{ACC + r}, 0")
    a("s_waitcnt lgkmcnt(0)\ns_barrier")
    stamp(a, 2)
    a(f"s_cmp_ge_u32 s{S_CT}, 10\ns_cbranch_scc1 L_p1_v")
    p1_main(a, False, "p1a")
    a("s_barrier")
    stamp(a, 5)
    p1_epilogue_qk(a)
    a("s_branch L_p1_stored")
    a.label("L_p1_v")
    p1_main(a, True, "p1v")
    a("s_barrier")
    stamp(a, 5)
    p1_epilogue_v(a)
    a.label("L_p1_stored")
    attention_setup(a)
    a(f"""
    s_waitcnt vmcnt(0)
    v_mov_b32 v10, {LDS_DONE}
    v_mov_b32 v11, 1
    s_mov_b64 exec, 1
    ds_add_rtn_u32 v12, v10, v11
    s_mov_b64 exec, -1
    s_waitcnt lgkmcnt(0)
    v_readfirstlane_b32 s29, v12
    """)
    stamp(a, 6)
    a("s_cmp_lg_u32 s29, 3\ns_cbranch_scc1 L_p1_done")
    a(f"s_lshl_b32 s30, s{S_CT}, 4\ns_add_u32 s30, s30, s{S_TT}\ns_mov_b32 s70, s30")
    store_flag(a, WS_F1, 70)
    a("s_branch L_p1_done")
    a.label("L_p1_idle")
    p1_produce_stats(a)
    a("s_waitcnt vmcnt(0)")
    p1_publish_stats(a, "L_idle_nonce")
    a("s_waitcnt vmcnt(0) lgkmcnt(0)\ns_barrier")
    a(f"s_cmp_lg_u32 s{S_W}, 0\ns_cbranch_scc1 L_p1_done0")
    store_flag(a, WS_F0, 2)
    a.label("L_p1_done0")
    attention_setup(a)
    a.label("L_p1_done")
    if stop_after == 1:
        a("s_waitcnt vmcnt(0)")
        stamp_flush(a, 7, P_WS, S_W, 0)
        a("s_endpgm")
    a.srd(RF, P_WS, WS_F1, FLAG_AREA)
    a("""
    s_mov_b64 exec, 0x3ff
    """)
    poll(a, "L_p2_f1", k2.V_FL, RF, 1, sleep=OPT["poll_sleep"])
    a(f"v_add_u32 v{k2.V_FL}, 256, v{k2.V_FL}\ns_mov_b64 exec, -1")
    stamp(a, 4)
    k2.PROG.update(on=True, srd=RF, nonce=S_NONCE, spin=S_SPIN, spin_max=SPIN_MAX)
    k2.attn_body(a, P_WS, "p2", lds_base=LDS_XCH, st_flag=" sc1", pre_barrier=False, prepared=True)
    stamp(a, 1)
    a("s_waitcnt vmcnt(0)\ns_barrier")
    stamp(a, 3)
    a(f"s_cmp_lg_u32 s{S_W}, 0\ns_cbranch_scc1 L_p2_flagged")
    a("s_lshl_b32 s71, s57, 5\ns_add_u32 s71, s71, s56")
    store_flag(a, WS_F2, 71, 16)
    a.label("L_p2_flagged")
    if stop_after == 2:
        a("s_waitcnt vmcnt(0)")
        stamp_flush(a, 9, P_WS, S_W, 0)
        a("s_endpgm")
    p3_early(a)
    p3_body(a)
    stamp(a, 11)
    a("s_waitcnt vmcnt(0)")
    stamp_flush(a, 12, P_WS, S_W, 0)
    a("s_endpgm")
    a.label("L_helper")
    stamp(a, 1)
    a(f"s_cmp_ge_u32 s{S_CT}, 15\ns_cbranch_scc1 L_h_idle")
    a(f"s_cmp_eq_u32 s{S_W}, 4\ns_cbranch_scc0 L_h_w")
    p1_loader(a, 0)
    a("s_branch L_h_bf")
    a.label("L_h_w")
    p1_loader(a, 1)
    a("s_branch L_h_moe")
    a.label("L_h_idle")
    a("s_barrier")
    nonce_from_lds(a)
    a(f"s_cmp_eq_u32 s{S_W}, 4\ns_cbranch_scc1 L_h_bf")
    a("s_cmp_ge_u32 s2, 240\ns_cbranch_scc1 L_h_moe")
    moe_tile_loads(a)
    a("s_branch L_h_moe")
    a.label("L_h_bf")
    stamp(a, 2)
    if stop_after == 1:
        a("s_endpgm")
    if OPT["wo_wait"]:
        wait_drained(a, "L_h_drn4")
        for _ in range(OPT["wo_delay"]):
            a("s_sleep 16")
    wo_loader(a)
    a("s_waitcnt vmcnt(0)")
    stamp(a, 3)
    stamp_flush(a, 4, P_WS, S_W, 0)
    a("s_endpgm")
    a.label("L_h_moe")
    stamp(a, 2)
    if stop_after == 1 or not OPT["moe"]:
        a("s_endpgm")
    a("s_setprio 3")
    a("s_cmp_eq_u32 s2, 255\ns_cbranch_scc0 L_h_nosel")
    moe_select(a)
    a("s_waitcnt vmcnt(0)\ns_endpgm")
    a.label("L_h_nosel")
    a("s_cmp_ge_u32 s2, 250\ns_cbranch_scc1 L_end")
    stamp(a, 3)
    a("s_cmp_ge_u32 s2, 240\ns_cbranch_scc1 L_h_fin")
    moe_tasks(a)
    stamp(a, 4)
    stamp_flush(a, 5, P_WS, S_W, 0)
    a("s_waitcnt vmcnt(0)\ns_endpgm")
    a.label("L_h_fin")
    moe_finish(a)
    stamp(a, 4)
    stamp_flush(a, 5, P_WS, S_W, 0)
    a("s_waitcnt vmcnt(0)")
    a.label("L_end")
    a("s_endpgm")
```

```python
from common import *

VQ, VO, VS, VP, VKV = 8, 40, 104, 136, 152
V_LIN, V_KM, V_KT, V_V0, V_V1, V_OT = 1, 2, 3, 4, 5, 7
V_FL, V_FD = 240, 241
PROG = {"on": False}
S_Q, S_K, S_OM, S_OT, S_V = 8, 12, 16, 20, 44
S_W, S_HEAD, S_QB, S_KOFF, S_CNT, S_VOFF = 24, 25, 26, 27, 28, 32
S_TT32, S_PAR, S_PB = 33, 34, 35
S_T0, S_T1 = 36, 37
OOB = 0x10000000
LDS_BYTES = 24576
MF = "v_mfma_f32_32x32x16_bf16"


def q_main(j): return vr(VQ + 8 * j, 4)
def q_tail(j): return vr(VQ + 8 * j + 4, 4)
def o_acc(j): return vr(VO + 16 * j, 16)
def s_buf(b): return VS + 16 * b
def p_buf(b): return VP + 8 * b
def k_main(st): return VKV + 16 * st
def k_tail(st): return VKV + 16 * st + 4
def v_0(st): return VKV + 16 * st + 8
def v_1(st): return VKV + 16 * st + 12


def exp_group(a, b, g):
    s, p = s_buf(b) + 4 * g, p_buf(b) + 2 * g
    for r in range(4):
        a(f"v_exp_f32 v{s + r}, v{s + r}")
    a(f"v_cvt_pk_bf16_f32 v{p}, v{s}, v{s + 1}")
    a(f"v_cvt_pk_bf16_f32 v{p + 1}, v{s + 2}, v{s + 3}")


def load_k(a, st, part):
    reg, off = (k_main(st), V_KM) if part == 0 else (k_tail(st), V_KT)
    a(f"buffer_load_dwordx4 {vr(reg, 4)}, v{off}, s[{S_K}:{S_K + 3}], s{S_KOFF} offen{LD['f']}")


def load_v(a, st, part):
    reg, off = (v_0(st), V_V0) if part == 0 else (v_1(st), V_V1)
    a(f"buffer_load_dwordx4 {vr(reg, 4)}, v{off}, s[{S_V}:{S_V + 3}], s{S_VOFF} offen{LD['f']}")


STAMPS = [1, 2]
LD = {"f": ""}


def phase(a, n, j, extra):
    cb = j & 1
    nb = cb ^ 1
    st_next = n % 4 if j < 3 else (n + 1) % 4
    jn = (j + 1) % 4
    st_prev = n % 4 if j > 0 else (n - 1) % 4
    jp = (j - 1) % 4
    sn = vr(s_buf(nb), 16)
    pp = p_buf(nb)

    def ex(slot):
        for f in extra.get(slot, ()):
            f()
    a(f"{MF} {sn}, {vr(k_main(st_next), 4)}, {q_main(jn)}, 0")
    ex(0)
    exp_group(a, cb, 0)
    a(f"{MF} {o_acc(jp)}, {vr(v_0(st_prev), 4)}, {vr(pp, 4)}, {o_acc(jp)}")
    ex(1)
    exp_group(a, cb, 1)
    a(f"{MF} {sn}, {vr(k_tail(st_next), 4)}, {q_tail(jn)}, {sn}")
    ex(2)
    exp_group(a, cb, 2)
    a(f"{MF} {o_acc(jp)}, {vr(v_1(st_prev), 4)}, {vr(pp + 4, 4)}, {o_acc(jp)}")
    ex(3)
    exp_group(a, cb, 3)


VAR = {"spread": True}


def tile(a, n, last_in_body, pfx=""):
    ld = (n + 3) % 4
    ex = [{}, {}, {}, {}]
    prog = PROG["on"]

    def put(ph, slot, f):
        ex[ph].setdefault(slot, []).append(f)
    if not VAR.get("noload"):
        put(0, 0, lambda: load_k(a, ld, 0))
        put(1, 0, lambda: load_k(a, ld, 1))
        put(2, 0, lambda: load_v(a, ld, 0))
        put(3, 0, lambda: load_v(a, ld, 1))
        put(1, 2, lambda: a(f"s_add_u32 s{S_KOFF}, s{S_KOFF}, 512"))
        put(3, 2, lambda: a(f"s_add_u32 s{S_VOFF}, s{S_VOFF}, {VT_BYTES}"))
        put(2, 3, lambda: a(f"s_waitcnt vmcnt({8 if prog and n in (1, 2) else 7})"))
    if prog and n == 1:
        def fl():
            a("s_mov_b64 exec, 0xf")
            a(f"buffer_load_dword v{V_FD}, v{V_FL}, s[{PROG['srd']}:{PROG['srd'] + 3}], 0 offen sc1")
            a("s_mov_b64 exec, -1")
        put(0, 1, fl)
    if prog and n == 3:
        def chk():
            a(f"v_cmp_ne_u32 vcc, s{PROG['nonce']}, v{V_FD}")
            a(f"s_and_b32 vcc_lo, vcc_lo, 0xf")
            a(f"s_cbranch_scc1 L_{pfx}_slow")
            a.label(f"L_{pfx}_resume")
            a(f"v_add_u32 v{V_FL}, 128, v{V_FL}")
        put(3, 2, chk)
    if last_in_body:
        put(3, 1, lambda: a(f"s_sub_u32 s{S_CNT}, s{S_CNT}, 1"))
        put(3, 3, lambda: a(f"s_cmp_lg_u32 s{S_CNT}, 0"))
    for ph in range(4):
        phase(a, n, ph, ex[ph])


def prog_slow_path(a, pfx):
    a.label(f"L_{pfx}_slow")
    a(f"s_cmp_le_u32 s{S_CNT}, 1\ns_cbranch_scc1 L_{pfx}_resume")
    a(f"s_mov_b32 s{PROG['spin']}, {PROG['spin_max']}\ns_mov_b64 exec, 0xf")
    a.label(f"L_{pfx}_spin")
    a(f"""
    buffer_load_dword v{V_FD}, v{V_FL}, s[{PROG['srd']}:{PROG['srd'] + 3}], 0 offen sc1
    s_waitcnt vmcnt(0)
    v_cmp_ne_u32 vcc, s{PROG['nonce']}, v{V_FD}
    s_cbranch_vccz L_{pfx}_spun
    s_sleep 2
    s_sub_u32 s{PROG['spin']}, s{PROG['spin']}, 1
    s_cmp_lg_u32 s{PROG['spin']}, 0
    s_cbranch_scc1 L_{pfx}_spin
    """)
    a.label(f"L_{pfx}_spun")
    a(f"s_mov_b64 exec, -1\ns_branch L_{pfx}_resume")


def exchange_and_store(a, wk, lds_base, st_flag, pre_barrier):
    keep = [0, 1] if wk == 0 else [2, 3]
    send = [2, 3] if wk == 0 else [0, 1]
    T = 216
    a(f"""
    s_mul_i32 s29, s{S_W}, 6144
    s_add_u32 s29, s29, {lds_base}
    v_add_u32 v0, s29, v{V_LIN}
    s_xor_b32 s30, s{S_W}, 2
    s_mul_i32 s30, s30, 6144
    s_add_u32 s30, s30, {lds_base}
    v_add_u32 v6, s30, v{V_LIN}
    """)
    if pre_barrier:
        a("s_barrier")
    for jj, j in enumerate(send):
        for g in range(3):
            a(f"ds_write_b128 v0, {vr(VO + 16 * j + 4 * g, 4)} offset:{(jj * 3 + g) * 1024}")
    a("s_waitcnt lgkmcnt(0)\ns_barrier")
    for jj, j in enumerate(keep):
        for g in range(3):
            a(f"ds_read_b128 {vr(T + 12 * jj + 4 * g, 4)}, v6 offset:{(jj * 3 + g) * 1024}")
    for jj, j in enumerate(keep):
        o = VO + 16 * j
        t = T + 12 * jj
        a(f"s_waitcnt lgkmcnt({3 * (1 - jj)})")
        for r in range(12):
            a(f"v_add_f32 v{o + r}, v{o + r}, v{t + r}")
        a(f"v_mov_b32 v{t}, v{o + 8}\nv_mov_b32 v{t + 1}, v{o + 8}\ns_nop 1")
        a(f"v_permlane32_swap_b32 v{t}, v{t + 1}")
        a("s_nop 1")
        a(f"v_rcp_f32 v{t + 2}, v{t + 1}")
        a("s_nop 0")
        for r in range(12):
            a(f"v_mul_f32 v{o + r}, v{o + r}, v{t + 2}")
        for r in range(6):
            a(f"v_cvt_pk_bf16_f32 v{t + 4 + r}, v{o + 2 * r}, v{o + 2 * r + 1}")
        a(f"""
        s_add_u32 s31, s{S_TT32}, {j}
        s_lshl_b32 s31, s31, 5
        s_add_u32 s31, s31, s{S_HEAD}
        s_lshl_b32 s{S_T0}, s31, 10
        s_lshl_b32 s{S_T1}, s31, 8
        """)
        a(f"buffer_store_dwordx4 {vr(t + 4, 4)}, v{V_LIN}, s[{S_OM}:{S_OM + 3}], s{S_T0} offen{st_flag}")
        a(f"buffer_store_dwordx2 {vr(t + 8, 2)}, v{V_OT}, s[{S_OT}:{S_OT + 3}], s{S_T1} offen{st_flag}")


def attn_setup(a):
    a(f"""
    s_and_b32 s29, s2, 7
    s_lshr_b32 s30, s2, 3
    s_and_b32 s{S_QB}, s30, 7
    s_lshr_b32 s30, s30, 3
    s_lshl_b32 s29, s29, 2
    s_add_u32 s{S_HEAD}, s29, s30
    v_lshlrev_b32 v{V_LIN}, 4, v6
    v_and_b32 v7, 31, v6
    v_lshrrev_b32 v0, 5, v6
    s_and_b32 s{S_PAR}, s{S_HEAD}, 1
    s_mul_i32 s{S_PB}, s{S_HEAD}, 5
    s_lshr_b32 s{S_PB}, s{S_PB}, 1
    v_add_u32 v{V_KM}, s{S_PAR}, v0
    v_lshlrev_b32 v{V_KM}, 15, v{V_KM}
    v_lshl_add_u32 v{V_KM}, v7, 4, v{V_KM}
    s_xor_b32 s29, s{S_PAR}, 1
    s_lshl_b32 s29, s29, 16
    v_lshlrev_b32 v{V_KT}, 4, v7
    v_add_u32 v{V_KT}, s29, v{V_KT}
    s_mul_i32 s29, s{S_HEAD}, 20
    v_add_u32 v{V_V0}, s29, v7
    v_mov_b32 v8, 640
    v_cmp_eq_u32 vcc, 20, v7
    v_mov_b32 v9, {OOB}
    v_cmp_eq_u32 s[30:31], 0, v0
    v_cndmask_b32 v{V_V0}, v{V_V0}, v8, vcc
    v_lshlrev_b32 v{V_V0}, 5, v{V_V0}
    v_lshl_add_u32 v{V_V0}, v0, 4, v{V_V0}
    v_cndmask_b32 v{V_KT}, v9, v{V_KT}, s[30:31]
    v_cmp_gt_u32 vcc, 21, v7
    v_lshlrev_b32 v7, 3, v7
    v_cndmask_b32 v{V_OT}, v9, v7, s[30:31]
    v_cndmask_b32 v{V_V0}, v9, v{V_V0}, vcc
    v_add_u32 v{V_V1}, {VJ_BYTES}, v{V_V0}
    s_and_b32 s29, s{S_W}, 1
    s_lshl_b32 s29, s29, 2
    s_lshl_b32 s{S_TT32}, s{S_QB}, 3
    s_add_u32 s{S_TT32}, s{S_TT32}, s29
    s_lshl_b32 s{S_PB}, s{S_PB}, 15
    """)


def attn_prepare(a, ws):
    a.srd(S_K, ws, WS_KP, QP_BYTES)
    a.srd(S_V, ws, WS_VI, VI_BYTES)
    a.srd(S_Q, ws, WS_QP, QP_BYTES)
    a.srd(S_OM, ws, WS_OM, OM_BYTES)
    a.srd(S_OT, ws, WS_OT, OT_BYTES)
    a(f"""
    s_lshl_b32 s{S_T0}, s{S_TT32}, 9
    s_add_u32 s{S_T0}, s{S_T0}, s{S_PB}
    s_lshr_b32 s29, s{S_W}, 1
    s_lshl_b32 s{S_KOFF}, s29, 14
    s_add_u32 s{S_KOFF}, s{S_KOFF}, s{S_PB}
    s_mul_i32 s{S_VOFF}, s29, {32 * VT_BYTES}
    """)
    for r in range(64):
        a(f"v_mov_b32 v{VO + r}, 0")
    for r in range(8):
        a(f"v_mov_b32 v{p_buf(1) + r}, 0")
        a(f"v_mov_b32 v{v_0(3) + r}, 0")
    a(f"s_mov_b32 s{S_CNT}, 8")


def attn_body(a, ws, pfx, lds_base=0, st_flag="", pre_barrier=False, prepared=False):
    if not prepared:
        attn_prepare(a, ws)
    for part in range(2):
        load_k(a, 0, part)
    for j in range(4):
        a(f"buffer_load_dwordx4 {q_main(j)}, v{V_KM}, s[{S_Q}:{S_Q + 3}], s{S_T0} offen{LD['f']}")
        a(f"buffer_load_dwordx4 {q_tail(j)}, v{V_KT}, s[{S_Q}:{S_Q + 3}], s{S_T0} offen{LD['f']}")
        a(f"s_add_u32 s{S_T0}, s{S_T0}, 512")
    for part in range(2):
        load_v(a, 0, part)
    a(f"s_add_u32 s{S_KOFF}, s{S_KOFF}, 512\ns_add_u32 s{S_VOFF}, s{S_VOFF}, {VT_BYTES}")
    for st in (1, 2):
        for part in range(2):
            load_k(a, st, part)
        for part in range(2):
            load_v(a, st, part)
        a(f"s_add_u32 s{S_KOFF}, s{S_KOFF}, 512\ns_add_u32 s{S_VOFF}, s{S_VOFF}, {VT_BYTES}")
    a("s_waitcnt vmcnt(10)")
    a(f"s_cmp_eq_u32 s{S_PAR}, 0\ns_cbranch_scc0 L_{pfx}_odd")
    for j in range(4):
        a(f"v_mov_b32 v{VQ + 8 * j + 6}, 0\nv_mov_b32 v{VQ + 8 * j + 7}, 0")
    a(f"s_branch L_{pfx}_masked")
    a.label(f"L_{pfx}_odd")
    for j in range(4):
        a(f"v_mov_b32 v{VQ + 8 * j + 4}, 0\nv_mov_b32 v{VQ + 8 * j + 5}, 0")
    a.label(f"L_{pfx}_masked")
    a("s_nop 1")
    a(f"{MF} {vr(s_buf(0), 16)}, {vr(k_main(0), 4)}, {q_main(0)}, 0")
    a(f"{MF} {vr(s_buf(0), 16)}, {vr(k_tail(0), 4)}, {q_tail(0)}, {vr(s_buf(0), 16)}")
    a("s_waitcnt vmcnt(8)")
    a("s_nop 7\ns_nop 3")
    stamp(a, STAMPS[0])
    if DIAG["on"]:
        a("s_waitcnt lgkmcnt(0)")
    a.raw(".p2align 3")
    a.label(f"L_{pfx}_loop")
    for n in range(4):
        tile(a, n, n == 3, pfx)
    a(f"s_cbranch_scc1 L_{pfx}_loop")
    stamp(a, STAMPS[1])
    a(f"{MF} {o_acc(3)}, {vr(v_0(3), 4)}, {vr(p_buf(1), 4)}, {o_acc(3)}")
    a(f"{MF} {o_acc(3)}, {vr(v_1(3), 4)}, {vr(p_buf(1) + 4, 4)}, {o_acc(3)}")
    a("s_nop 7\ns_nop 3")
    a(f"s_cmp_ge_u32 s{S_W}, 2\ns_cbranch_scc1 L_{pfx}_wk1")
    exchange_and_store(a, 0, lds_base, st_flag, pre_barrier)
    a(f"s_branch L_{pfx}_stored")
    a.label(f"L_{pfx}_wk1")
    exchange_and_store(a, 1, lds_base, st_flag, pre_barrier)
    a.label(f"L_{pfx}_stored")
    if PROG["on"]:
        a(f"s_branch L_{pfx}_cont")
        prog_slow_path(a, pfx)
        a.label(f"L_{pfx}_cont")


def gen_k2(a, name="attn_kernel"):
    a.begin_kernel(name)
    a(f"""
    s_cmp_ge_u32 s2, 256
    s_cbranch_scc1 L_k2_end
    """)
    stamp(a, 0)
    a(f"""
    s_load_dwordx2 s[4:5], s[0:1], {KA_WS}
    v_lshrrev_b32 v5, 6, v0
    v_and_b32 v6, 63, v0
    v_readfirstlane_b32 s{S_W}, v5
    """)
    attn_setup(a)
    a("s_waitcnt lgkmcnt(0)")
    attn_body(a, 4, "k2")
    stamp(a, 3)
    a("s_waitcnt vmcnt(0)")
    stamp(a, 4)
    stamp_flush(a, 5, 4, S_W, 2)
    a.label("L_k2_end")
    a("s_endpgm")
```

```python
import sys
from common import *
import fused, lint

def build(stop_after=3, listform=False):
    a = Asm()
    a.raw(HEADER.rstrip("\n"))
    name = NAME + "_kernel"
    if listform:
        a.raw(f"; @launch kernel={name} grid=(256,1,1) block=(384,1,1) lds={fused.LDS_BYTES}")
    else:
        a.raw(f"; @launch grid=(256,1,1) block=(384,1,1) lds={fused.LDS_BYTES}")
    a.raw('.amdgcn_target "amdgcn-amd-amdhsa--gfx950"')
    fused.gen_fused(a, name, stop_after)
    a.descriptor(name, 256)
    text = a.text()
    errs = lint.lint(text, [name])
    for e in errs:
        print(e)
    print(f"lint: {len(errs)} problems", file=sys.stderr)
    return text

if __name__ == "__main__":
    open("f1.s", "w").write(build(1, True))
    open("f2.s", "w").write(build(2, True))
    open("f3.s", "w").write(build(3, True))
    open("fused.s", "w").write(build(3, False))
    DIAG["on"] = True
    open("f3_st.s", "w").write(build(3, True))
    fused.OPT["moe_wait"] = True
    open("f3_st_b.s", "w").write(build(3, True))
    fused.OPT["moe_wait"] = False
    DIAG["abs"] = True
    open("f3_abs.s", "w").write(build(3, True))
    for nm, fl in (("plain", ""), ("nt", "nt"), ("sc01", "sc0 sc1"), ("sc1nt", "sc1 nt")):
        fused.OPT["p1st"] = fl
        open(f"f3_abs_{nm}.s", "w").write(build(3, True))
    fused.OPT["p1st"] = "sc1"
    DIAG["abs"] = False
    DIAG["real"] = True
    for wg in (0, 100):
        DIAG["wg"] = wg
        open(f"fused_dbg{wg}.s", "w").write(build(3, False))
```
